```python
import torch

def _softmax(x, axis=-1):
    return torch.softmax(x, dim=axis)
def _gelu(x):
    return torch.nn.functional.gelu(x, approximate="tanh")
def _silu(x):
    return torch.nn.functional.silu(x)
def _sigmoid(x):
    return torch.sigmoid(x)
def _layernorm(x, axis=-1, eps=1e-5):
    m = x.mean(dim=axis, keepdim=True)
    v = x.var(dim=axis, keepdim=True, unbiased=False)
    return (x - m) / torch.sqrt(v + eps)
def _scatter_add(tgt, idx, src, axis=0):
    return tgt.clone().index_add_(axis, idx, src)
def _segment_sum(src, seg, n):
    out = torch.zeros((n,) + src.shape[1:], dtype=src.dtype)
    return out.index_add_(0, seg, src)
def _pad(x, pw):
    flat = tuple(v for pair in reversed(pw) for v in pair)
    return torch.nn.functional.pad(x, flat)

kernel_name = 'standalone__rezero__sampling'

def setup_inputs():

    _w = (lambda a: (lambda t: t.to(torch.bfloat16) if t.is_floating_point() else t)(torch.as_tensor(a)))
    B, S, D = 512, 32, 640
    return {
        "x": _w((lambda *s: torch.randn(*s, dtype=torch.bfloat16) * 0.05)(B, S, D)),
        "fx": _w((lambda *s: torch.randn(*s, dtype=torch.bfloat16) * 0.8)(B, S, D)),
        "alpha": _w((lambda *s: torch.randn(*s, dtype=torch.bfloat16) * 0.8)(1) * 0.1),
    }

def reference(x, fx, alpha):
    return x + alpha * fx
```

```python
import sys

HEADER = """; Kernarg layout for this problem (48 bytes, ptrs only, base s[0:1]):
; @launch grid=({grid},1,1) block=({block},1,1) lds=0
.amdgcn_target "amdgcn-amd-amdhsa--gfx950"
.text
.globl standalone__rezero__sampling_kernel
.p2align 8
.type standalone__rezero__sampling_kernel,@function
standalone__rezero__sampling_kernel:
"""

FOOTER = """L_done:
    s_endpgm
.section .rodata,"a"
.p2align 6
.amdhsa_kernel standalone__rezero__sampling_kernel
  .amdhsa_next_free_vgpr {vgpr}
  .amdhsa_next_free_sgpr {sgpr}
  .amdhsa_accum_offset {accum}
  .amdhsa_group_segment_fixed_size 0
  .amdhsa_kernarg_size 48
  .amdhsa_user_sgpr_count 2
  .amdhsa_user_sgpr_kernarg_segment_ptr 1
  .amdhsa_system_sgpr_workgroup_id_x 1
  .amdhsa_float_denorm_mode_32 3
  .amdhsa_float_denorm_mode_16_64 3
.end_amdhsa_kernel
"""

NBYTES = 512 * 32 * 640 * 2
NCHUNK = NBYTES // 16


def scale_fx(f, t, sa):
    o = []
    for i in range(4):
        o.append(f"    v_lshlrev_b32 v{t+2*i}, 16, v{f+i}")
        o.append(f"    v_and_b32 v{t+2*i+1}, 0xffff0000, v{f+i}")
    for i in range(4):
        o.append(f"    v_pk_mul_f32 v[{t+2*i}:{t+2*i+1}], v[{t+2*i}:{t+2*i+1}], s[{sa}:{sa+1}]")
    for i in range(4):
        o.append(f"    v_cvt_pk_bf16_f32 v{f+i}, v{t+2*i}, v{t+2*i+1}")
    for i in range(4):
        o.append(f"    v_lshlrev_b32 v{t+2*i}, 16, v{f+i}")
        o.append(f"    v_and_b32 v{t+2*i+1}, 0xffff0000, v{f+i}")
    return o


def add_x(x, t, u, d):
    o = []
    for i in range(4):
        o.append(f"    v_lshlrev_b32 v{u+2*i}, 16, v{x+i}")
        o.append(f"    v_and_b32 v{u+2*i+1}, 0xffff0000, v{x+i}")
    for i in range(4):
        o.append(f"    v_pk_add_f32 v[{t+2*i}:{t+2*i+1}], v[{u+2*i}:{u+2*i+1}], v[{t+2*i}:{t+2*i+1}]")
    for i in range(4):
        o.append(f"    v_cvt_pk_bf16_f32 v{d+i}, v{t+2*i}, v{t+2*i+1}")
    return o


def gen_oneshot(U=1, block=256, ld="", st="", mode="wg", xcd=False):
    per_wg = U * block
    assert NCHUNK % per_wg == 0
    grid = NCHUNK // per_wg
    span = per_wg * 16
    L = []
    A = L.append
    A("    s_load_dwordx4 s[4:7], s[0:1], 0        ; x, fx")
    A("    s_load_dwordx4 s[8:11], s[0:1], 16")
    A(f"    s_cmp_ge_u32 s2, {grid}")
    A("    s_cbranch_scc1 L_done")
    if xcd:
        assert grid % 8 == 0
        A("    s_and_b32 s3, s2, 7")
        A(f"    s_mul_i32 s3, s3, {grid//8}")
        A("    s_lshr_b32 s2, s2, 3")
        A("    s_add_u32 s2, s2, s3")
    A(f"    s_mul_i32 s3, s2, {span}")
    A("    v_lshl_add_u32 v0, v0, 4, s3")
    step = block * 16
    addr = []
    for u in range(U):
        off = u * step
        addr.append(off)
    vregs = {}
    nextv = 1
    def vaddr(u):
        off = u * step
        base = (off // 4096) * 4096
        rem = off - base
        if base == 0:
            return "v0", rem
        if base not in vregs:
            nonlocal nextv
            vregs[base] = nextv
            A(f"    v_add_u32 v{nextv}, {base}, v0")
            nextv += 1
        return f"v{vregs[base]}", rem
    va = [vaddr(u) for u in range(U)]
    dbase = (nextv + 1) // 2 * 2
    dbase = max(dbase, 2)
    F = [dbase + 8 * u for u in range(U)]
    X = [dbase + 8 * u + 4 for u in range(U)]
    T = dbase + 8 * U
    Ureg = T + 8
    nv = Ureg + 8
    A("    s_waitcnt lgkmcnt(0)")
    A("    s_load_dword s12, s[8:9], 0")
    for u in range(U):
        r, imm = va[u]
        o = f" offset:{imm}" if imm else ""
        A(f"    global_load_dwordx4 v[{F[u]}:{F[u]+3}], {r}, s[6:7]{o} {ld}")
        A(f"    global_load_dwordx4 v[{X[u]}:{X[u]+3}], {r}, s[4:5]{o} {ld}")
    A("    s_waitcnt lgkmcnt(0)")
    A("    s_lshl_b32 s12, s12, 16")
    A("    s_mov_b32 s13, s12")
    nstores = 0
    for u in range(U):
        outstanding_loads_after_f = 2 * (U - u) - 1
        A(f"    s_waitcnt vmcnt({min(63, outstanding_loads_after_f + nstores)})")
        L.extend(scale_fx(F[u], T, 12))
        A(f"    s_waitcnt vmcnt({min(63, outstanding_loads_after_f - 1 + nstores)})")
        L.extend(add_x(X[u], T, Ureg, F[u]))
        r, imm = va[u]
        o = f" offset:{imm}" if imm else ""
        A(f"    global_store_dwordx4 {r}, v[{F[u]}:{F[u]+3}], s[10:11]{o} {st}")
        nstores += 1
    vg = (nv + 7) // 8 * 8
    return HEADER.format(grid=grid, block=block) + "\n".join(L) + "\n" + FOOTER.format(vgpr=vg, sgpr=16, accum=vg)


if __name__ == "__main__":
    import json
    name = sys.argv[1]
    kw = json.loads(sys.argv[2]) if len(sys.argv) > 2 else {}
    fn = kw.pop("fn", "oneshot")
    s = globals()["gen_" + fn](**kw)
    open(name, "w").write(s)
```

```python
import sys

HEADER = """; Kernarg layout for this problem (48 bytes, ptrs only, base s[0:1]):
; @launch grid=({grid},1,1) block=({block},1,1) lds=0
.amdgcn_target "amdgcn-amd-amdhsa--gfx950"
.text
.globl standalone__rezero__sampling_kernel
.p2align 8
.type standalone__rezero__sampling_kernel,@function
standalone__rezero__sampling_kernel:
"""

FOOTER = """L_done:
    s_endpgm
.section .rodata,"a"
.p2align 6
.amdhsa_kernel standalone__rezero__sampling_kernel
  .amdhsa_next_free_vgpr {vgpr}
  .amdhsa_next_free_sgpr {sgpr}
  .amdhsa_accum_offset {accum}
  .amdhsa_group_segment_fixed_size 0
  .amdhsa_kernarg_size 48
  .amdhsa_user_sgpr_count 2
  .amdhsa_user_sgpr_kernarg_segment_ptr 1
  .amdhsa_system_sgpr_workgroup_id_x 1
  .amdhsa_float_denorm_mode_32 3
  .amdhsa_float_denorm_mode_16_64 3
.end_amdhsa_kernel
"""

NBYTES = 512 * 32 * 640 * 2
NCHUNK = NBYTES // 16


def scale_fx(f, t, sa):
    o = []
    for i in range(4):
        o.append(f"    v_lshlrev_b32 v{t+2*i}, 16, v{f+i}")
        o.append(f"    v_and_b32 v{t+2*i+1}, 0xffff0000, v{f+i}")
    for i in range(4):
        o.append(f"    v_pk_mul_f32 v[{t+2*i}:{t+2*i+1}], v[{t+2*i}:{t+2*i+1}], s[{sa}:{sa+1}]")
    for i in range(4):
        o.append(f"    v_cvt_pk_bf16_f32 v{f+i}, v{t+2*i}, v{t+2*i+1}")
    for i in range(4):
        o.append(f"    v_lshlrev_b32 v{t+2*i}, 16, v{f+i}")
        o.append(f"    v_and_b32 v{t+2*i+1}, 0xffff0000, v{f+i}")
    return o


def add_x(x, t, u, d):
    o = []
    for i in range(4):
        o.append(f"    v_lshlrev_b32 v{u+2*i}, 16, v{x+i}")
        o.append(f"    v_and_b32 v{u+2*i+1}, 0xffff0000, v{x+i}")
    for i in range(4):
        o.append(f"    v_pk_add_f32 v[{t+2*i}:{t+2*i+1}], v[{u+2*i}:{u+2*i+1}], v[{t+2*i}:{t+2*i+1}]")
    for i in range(4):
        o.append(f"    v_cvt_pk_bf16_f32 v{d+i}, v{t+2*i}, v{t+2*i+1}")
    return o


def gen_oneshot(U=1, block=256, ld="", st="", mode="wg", xcd=False, noload=False, nostore=False, onlyx=False):
    per_wg = U * block
    assert NCHUNK % per_wg == 0
    grid = NCHUNK // per_wg
    span = per_wg * 16
    L = []
    A = L.append
    A("    s_load_dwordx4 s[4:7], s[0:1], 0        ; x, fx")
    A("    s_load_dwordx4 s[8:11], s[0:1], 16")
    A(f"    s_cmp_ge_u32 s2, {grid}")
    A("    s_cbranch_scc1 L_done")
    if xcd:
        assert grid % 8 == 0
        A("    s_and_b32 s3, s2, 7")
        A(f"    s_mul_i32 s3, s3, {grid//8}")
        A("    s_lshr_b32 s2, s2, 3")
        A("    s_add_u32 s2, s2, s3")
    A(f"    s_mul_i32 s3, s2, {span}")
    A("    v_lshl_add_u32 v0, v0, 4, s3")
    step = block * 16
    addr = []
    for u in range(U):
        off = u * step
        addr.append(off)
    vregs = {}
    nextv = 1
    def vaddr(u):
        off = u * step
        base = (off // 4096) * 4096
        rem = off - base
        if base == 0:
            return "v0", rem
        if base not in vregs:
            nonlocal nextv
            vregs[base] = nextv
            A(f"    v_add_u32 v{nextv}, {base}, v0")
            nextv += 1
        return f"v{vregs[base]}", rem
    va = [vaddr(u) for u in range(U)]
    dbase = (nextv + 1) // 2 * 2
    dbase = max(dbase, 2)
    F = [dbase + 8 * u for u in range(U)]
    X = [dbase + 8 * u + 4 for u in range(U)]
    T = dbase + 8 * U
    Ureg = T + 8
    nv = Ureg + 8
    A("    s_waitcnt lgkmcnt(0)")
    A("    s_load_dword s12, s[8:9], 0")
    for u in range(U):
        r, imm = va[u]
        o = f" offset:{imm}" if imm else ""
        if noload:
            continue
        if not onlyx:
            A(f"    global_load_dwordx4 v[{F[u]}:{F[u]+3}], {r}, s[6:7]{o} {ld}")
        A(f"    global_load_dwordx4 v[{X[u]}:{X[u]+3}], {r}, s[4:5]{o} {ld}")
    A("    s_waitcnt lgkmcnt(0)")
    A("    s_lshl_b32 s12, s12, 16")
    A("    s_mov_b32 s13, s12")
    nstores = 0
    for u in range(U):
        outstanding_loads_after_f = 2 * (U - u) - 1
        A(f"    s_waitcnt vmcnt({min(63, outstanding_loads_after_f + nstores)})")
        L.extend(scale_fx(F[u], T, 12))
        A(f"    s_waitcnt vmcnt({min(63, outstanding_loads_after_f - 1 + nstores)})")
        L.extend(add_x(X[u], T, Ureg, F[u]))
        r, imm = va[u]
        o = f" offset:{imm}" if imm else ""
        if nostore:
            A(f"    ; nostore global_store_dwordx4")
            continue
        A(f"    global_store_dwordx4 {r}, v[{F[u]}:{F[u]+3}], s[10:11]{o} {st}")
        nstores += 1
    vg = (nv + 7) // 8 * 8
    return HEADER.format(grid=grid, block=block) + "\n".join(L) + "\n" + FOOTER.format(vgpr=vg, sgpr=16, accum=vg)


if __name__ == "__main__":
    import json
    name = sys.argv[1]
    kw = json.loads(sys.argv[2]) if len(sys.argv) > 2 else {}
    fn = kw.pop("fn", "oneshot")
    s = globals()["gen_" + fn](**kw)
    open(name, "w").write(s)
```

```python
import sys
sys.path.insert(0,'gen')
import gen
def add_spin(s, ticks, instr="s_memrealtime"):
    s = s.replace("standalone__rezero__sampling_kernel:\n", f"standalone__rezero__sampling_kernel:\n    {instr} s[20:21]\n",1)
    spin = f"""    s_cmp_lg_u32 s30, 0
    s_cbranch_scc1 L_done
L_spin:
    {instr} s[22:23]
    s_waitcnt lgkmcnt(0)
    s_sub_u32 s24, s22, s20
    s_cmp_lt_u32 s24, {ticks}
    s_cbranch_scc1 L_spin
"""
    s = s.replace("L_done:\n", spin + "L_done:\n",1)
    s = s.replace("    s_cmp_ge_u32 s2,", "    s_mov_b32 s30, s2\n    s_cmp_ge_u32 s2,",1)
    s = s.replace(".amdhsa_next_free_sgpr 16", ".amdhsa_next_free_sgpr 40")
    return s
if __name__=="__main__":
    b=gen.gen_oneshot(st="sc0 sc1")
    open('e0.s','w').write(add_spin(b,3000))
    open('e1.s','w').write(add_spin(b,72000,"s_memtime"))
    open('e2.s','w').write(add_spin(b,36000,"s_memtime"))
    open('e3.s','w').write(add_spin(b,1500))
    open('e4.s','w').write(add_spin(b,144000,"s_memtime"))
    open('e5.s','w').write(b)
```

```python
import sys

HEADER = """; Kernarg layout for this problem (48 bytes, ptrs only, base s[0:1]):
; @launch grid=({grid},1,1) block=({block},1,1) lds=0
.amdgcn_target "amdgcn-amd-amdhsa--gfx950"
.text
.globl standalone__rezero__sampling_kernel
.p2align 8
.type standalone__rezero__sampling_kernel,@function
standalone__rezero__sampling_kernel:
"""

FOOTER = """L_done:
    s_endpgm
.section .rodata,"a"
.p2align 6
.amdhsa_kernel standalone__rezero__sampling_kernel
  .amdhsa_next_free_vgpr {vgpr}
  .amdhsa_next_free_sgpr {sgpr}
  .amdhsa_accum_offset {accum}
  .amdhsa_group_segment_fixed_size 0
  .amdhsa_kernarg_size 48
  .amdhsa_user_sgpr_count 2
  .amdhsa_user_sgpr_kernarg_segment_ptr 1
  .amdhsa_system_sgpr_workgroup_id_x 1
  .amdhsa_float_denorm_mode_32 3
  .amdhsa_float_denorm_mode_16_64 3
.end_amdhsa_kernel
"""

NBYTES = 512 * 32 * 640 * 2
NCHUNK = NBYTES // 16


def scale_fx(f, t, sa):
    o = []
    for i in range(4):
        o.append(f"    v_lshlrev_b32 v{t+2*i}, 16, v{f+i}")
        o.append(f"    v_and_b32 v{t+2*i+1}, 0xffff0000, v{f+i}")
    for i in range(4):
        o.append(f"    v_pk_mul_f32 v[{t+2*i}:{t+2*i+1}], v[{t+2*i}:{t+2*i+1}], s[{sa}:{sa+1}]")
    for i in range(4):
        o.append(f"    v_cvt_pk_bf16_f32 v{f+i}, v{t+2*i}, v{t+2*i+1}")
    for i in range(4):
        o.append(f"    v_lshlrev_b32 v{t+2*i}, 16, v{f+i}")
        o.append(f"    v_and_b32 v{t+2*i+1}, 0xffff0000, v{f+i}")
    return o


def add_x(x, t, u, d):
    o = []
    for i in range(4):
        o.append(f"    v_lshlrev_b32 v{u+2*i}, 16, v{x+i}")
        o.append(f"    v_and_b32 v{u+2*i+1}, 0xffff0000, v{x+i}")
    for i in range(4):
        o.append(f"    v_pk_add_f32 v[{t+2*i}:{t+2*i+1}], v[{u+2*i}:{u+2*i+1}], v[{t+2*i}:{t+2*i+1}]")
    for i in range(4):
        o.append(f"    v_cvt_pk_bf16_f32 v{d+i}, v{t+2*i}, v{t+2*i+1}")
    return o


def gen_oneshot(U=1, block=256, ld="", st="", mode="wg", xcd=False, noload=False, nostore=False, onlyx=False, stmask=0, ldmask=0, kx=8, stpriv=False, wb=0, wbflags="sc1", wbwait=True):
    per_wg = U * block
    assert NCHUNK % per_wg == 0
    grid = NCHUNK // per_wg
    span = per_wg * 16
    L = []
    A = L.append
    A("    s_load_dwordx4 s[4:7], s[0:1], 0        ; x, fx")
    A("    s_load_dwordx4 s[8:11], s[0:1], 16")
    if kx != 8:
        A("    s_and_b32 s3, s2, 7")
        A(f"    s_cmp_ge_u32 s3, {kx}")
        A("    s_cbranch_scc1 L_done")
        A("    s_lshr_b32 s2, s2, 3")
        A(f"    s_mul_i32 s2, s2, {kx}")
        A("    s_add_u32 s2, s2, s3")
    A(f"    s_cmp_ge_u32 s2, {grid}")
    A("    s_cbranch_scc1 L_done")
    if xcd:
        assert grid % 8 == 0
        A("    s_and_b32 s3, s2, 7")
        A(f"    s_mul_i32 s3, s3, {grid//8}")
        A("    s_lshr_b32 s2, s2, 3")
        A("    s_add_u32 s2, s2, s3")
    if stpriv:
        A("    s_and_b32 s14, s2, 7")
        A(f"    s_mul_i32 s14, s14, {stmask+1}")
    A(f"    s_mul_i32 s3, s2, {span}")
    A("    v_lshl_add_u32 v0, v0, 4, s3")
    step = block * 16
    addr = []
    for u in range(U):
        off = u * step
        addr.append(off)
    vregs = {}
    nextv = 1
    def vaddr(u):
        off = u * step
        base = (off // 4096) * 4096
        rem = off - base
        if base == 0:
            return "v0", rem
        if base not in vregs:
            nonlocal nextv
            vregs[base] = nextv
            A(f"    v_add_u32 v{nextv}, {base}, v0")
            nextv += 1
        return f"v{vregs[base]}", rem
    if ldmask:
        A(f"    v_and_b32 v0, {hex(ldmask)}, v0")
    va = [vaddr(u) for u in range(U)]
    dbase = (nextv + 1) // 2 * 2
    dbase = max(dbase, 2)
    F = [dbase + 8 * u for u in range(U)]
    X = [dbase + 8 * u + 4 for u in range(U)]
    T = dbase + 8 * U
    Ureg = T + 8
    nv = Ureg + 8
    A("    s_waitcnt lgkmcnt(0)")
    A("    s_load_dword s12, s[8:9], 0")
    for u in range(U):
        r, imm = va[u]
        o = f" offset:{imm}" if imm else ""
        if noload:
            continue
        if not onlyx:
            A(f"    global_load_dwordx4 v[{F[u]}:{F[u]+3}], {r}, s[6:7]{o} {ld}")
        A(f"    global_load_dwordx4 v[{X[u]}:{X[u]+3}], {r}, s[4:5]{o} {ld}")
    A("    s_waitcnt lgkmcnt(0)")
    A("    s_lshl_b32 s12, s12, 16")
    A("    s_mov_b32 s13, s12")
    nstores = 0
    for u in range(U):
        outstanding_loads_after_f = 2 * (U - u) - 1
        A(f"    s_waitcnt vmcnt({min(63, outstanding_loads_after_f + nstores)})")
        L.extend(scale_fx(F[u], T, 12))
        A(f"    s_waitcnt vmcnt({min(63, outstanding_loads_after_f - 1 + nstores)})")
        L.extend(add_x(X[u], T, Ureg, F[u]))
        r, imm = va[u]
        o = f" offset:{imm}" if imm else ""
        if nostore:
            A(f"    ; nostore global_store_dwordx4")
            continue
        if stmask:
            A(f"    v_and_b32 {r}, {hex(stmask)}, {r}")
            if stpriv:
                A(f"    v_add_u32 {r}, s14, {r}")
        A(f"    global_store_dwordx4 {r}, v[{F[u]}:{F[u]+3}], s[10:11]{o} {st}")
        nstores += 1
    if wb:
        A(f"    s_lshr_b32 s15, s2, 3")
        A(f"    s_and_b32 s15, s15, {wb-1}")
        A(f"    v_readfirstlane_b32 s14, v0")
        A(f"    s_sub_u32 s14, s14, s3")
        A(f"    s_or_b32 s15, s15, s14")
        A(f"    s_cmp_lg_u32 s15, 0")
        A(f"    s_cbranch_scc1 L_done")
        if wbwait:
            A(f"    s_waitcnt vmcnt(0)")
        A(f"    buffer_wbl2 {wbflags}")
    vg = (nv + 7) // 8 * 8
    return HEADER.format(grid=grid*8//kx, block=block) + "\n".join(L) + "\n" + FOOTER.format(vgpr=vg, sgpr=16, accum=vg)


def body_chunks(L, U, va, dbase, ld, st, nostore=False):
    A = L.append
    F = [dbase + 8 * u for u in range(U)]
    X = [dbase + 8 * u + 4 for u in range(U)]
    T = dbase + 8 * U
    Ureg = T + 8
    nv = Ureg + 8
    A("    s_waitcnt lgkmcnt(0)")
    A("    s_load_dword s12, s[8:9], 0")
    for u in range(U):
        r, imm = va[u]
        o = f" offset:{imm}" if imm else ""
        A(f"    global_load_dwordx4 v[{F[u]}:{F[u]+3}], {r}, s[6:7]{o} {ld}")
        A(f"    global_load_dwordx4 v[{X[u]}:{X[u]+3}], {r}, s[4:5]{o} {ld}")
    A("    s_waitcnt lgkmcnt(0)")
    A("    s_lshl_b32 s12, s12, 16")
    A("    s_mov_b32 s13, s12")
    nstores = 0
    for u in range(U):
        ol = 2 * (U - u) - 1
        A(f"    s_waitcnt vmcnt({min(63, ol + nstores)})")
        L.extend(scale_fx(F[u], T, 12))
        A(f"    s_waitcnt vmcnt({min(63, ol - 1 + nstores)})")
        L.extend(add_x(X[u], T, Ureg, F[u]))
        r, imm = va[u]
        o = f" offset:{imm}" if imm else ""
        if nostore:
            A("    ; nostore global_store_dwordx4")
            continue
        A(f"    global_store_dwordx4 {r}, v[{F[u]}:{F[u]+3}], s[10:11]{o} {st}")
        nstores += 1
    return nv


def gen_numa(K=1, ld="", st="", c=0, nostore=False, block=256, fm=None):
    assert block == 256
    npairs = NBYTES // 16384
    assert npairs % K == 0
    nj = npairs // K
    assert nj % 4 == 0
    grid = nj * 2
    L = []
    A = L.append
    A("    s_load_dwordx4 s[4:7], s[0:1], 0        ; x, fx")
    A("    s_load_dwordx4 s[8:11], s[0:1], 16")
    A(f"    s_cmp_ge_u32 s2, {grid}")
    A("    s_cbranch_scc1 L_done")
    A("    s_lshr_b32 s14, s2, 3")
    A("    s_lshl_b32 s14, s14, 2")
    A("    s_and_b32 s15, s2, 3")
    A("    s_add_u32 s14, s14, s15                 ; j")
    A("    s_bfe_u32 s15, s2, 0x10002              ; g = bit 2")
    if c:
        A("    s_xor_b32 s15, s15, 1")
    if K > 1:
        A(f"    s_mul_i32 s14, s14, {K}               ; p0 = j*K")
    va = []
    A("    v_lshlrev_b32 v0, 4, v0")
    nextv = 1
    for k in range(K):
        A(f"    s_add_u32 s16, s14, {k}")
        A("    s_bfe_u32 s17, s16, 0x10007")
        A("    s_xor_b32 s17, s17, s15")
        if fm is not None:
            A(f"    s_and_b32 s18, s16, {fm}")
            A("    s_cmp_eq_u32 s18, 0")
            A("    s_cselect_b32 s18, 1, 0")
            A("    s_xor_b32 s17, s17, s18")
        A("    s_lshl_b32 s17, s17, 13")
        A("    s_lshl_b32 s16, s16, 14")
        A("    s_add_u32 s16, s16, s17")
        A(f"    v_add_u32 v{nextv}, s16, v0")
        A(f"    v_add_u32 v{nextv+1}, 4096, v{nextv}")
        va.append((f"v{nextv}", 0))
        va.append((f"v{nextv+1}", 0))
        nextv += 2
    dbase = (nextv + 1) // 2 * 2
    nv = body_chunks(L, 2 * K, va, dbase, ld, st, nostore)
    vg = (nv + 7) // 8 * 8
    return HEADER.format(grid=grid, block=block) + "\n".join(L) + "\n" + FOOTER.format(vgpr=vg, sgpr=24, accum=vg)


def gen_persist(grid=1024, block=256, ld="", st="", contig=False, prio=0, vg=None):
    per_iter = grid * block
    assert NCHUNK % per_iter == 0
    n = NCHUNK // per_iter
    L = []
    A = L.append
    lb = (block * 16).bit_length() - 1
    A("    s_load_dwordx8 s[4:11], s[0:1], 0")
    A(f"    s_cmp_ge_u32 s2, {grid}")
    A("    s_cbranch_scc1 L_done")
    if contig:
        A(f"    s_mul_i32 s3, s2, {block*16*n}")
        stride = block * 16
    else:
        A(f"    s_lshl_b32 s3, s2, {lb}")
        stride = per_iter * 16
    A("    v_lshl_add_u32 v0, v0, 4, s3")
    A("    s_waitcnt lgkmcnt(0)")
    A(f"    global_load_dwordx4 v[2:5], v0, s[6:7] {ld}")
    A(f"    global_load_dwordx4 v[6:9], v0, s[4:5] {ld}")
    A("    s_load_dword s12, s[8:9], 0")
    A(f"    s_mov_b32 s14, {n-1}")
    A("    s_mov_b32 s15, 0xffff0000")
    A(f"    s_mov_b32 s16, {stride}")
    if prio:
        A(f"    s_setprio {prio}")
    A("    s_waitcnt lgkmcnt(0)")
    A("    s_lshl_b32 s12, s12, 16")
    A("    s_mov_b32 s13, s12")
    A("    s_waitcnt vmcnt(0)")
    A("    s_branch L_body")
    A("L_loop:")
    A("    s_waitcnt vmcnt(1)")
    A("L_body:")
    F, X, T, U, D = 2, 6, 10, 18, 26
    for k in range(4):
        A(f"    v_lshlrev_b32 v{T+2*k}, 16, v{F+k}")
        A(f"    v_and_b32 v{T+2*k+1}, s15, v{F+k}")
    for k in range(4):
        A(f"    v_lshlrev_b32 v{U+2*k}, 16, v{X+k}")
        A(f"    v_and_b32 v{U+2*k+1}, s15, v{X+k}")
    A("    s_cmp_eq_u32 s14, 0")
    A("    s_cbranch_scc1 L_noload")
    A("    v_add_u32 v1, s16, v0")
    A(f"    global_load_dwordx4 v[2:5], v1, s[6:7] {ld}")
    A(f"    global_load_dwordx4 v[6:9], v1, s[4:5] {ld}")
    A("L_noload:")
    for k in range(4):
        A(f"    v_pk_mul_f32 v[{T+2*k}:{T+2*k+1}], v[{T+2*k}:{T+2*k+1}], s[12:13]")
    for k in range(4):
        A(f"    v_cvt_pk_bf16_f32 v{D+k}, v{T+2*k}, v{T+2*k+1}")
    for k in range(4):
        A(f"    v_lshlrev_b32 v{T+2*k}, 16, v{D+k}")
        A(f"    v_and_b32 v{T+2*k+1}, s15, v{D+k}")
    for k in range(4):
        A(f"    v_pk_add_f32 v[{T+2*k}:{T+2*k+1}], v[{U+2*k}:{U+2*k+1}], v[{T+2*k}:{T+2*k+1}]")
    for k in range(4):
        A(f"    v_cvt_pk_bf16_f32 v{D+k}, v{T+2*k}, v{T+2*k+1}")
    A(f"    global_store_dwordx4 v0, v[{D}:{D+3}], s[10:11] {st}")
    A("    s_sub_u32 s14, s14, 1")
    A("    s_nop 0")
    A("    v_mov_b32 v0, v1")
    A("    s_cbranch_scc0 L_loop")
    v = vg or 32
    return HEADER.format(grid=grid, block=block) + "\n".join(L) + "\n" + FOOTER.format(vgpr=v, sgpr=24, accum=v)


def persist_body(A, ld, st, first_wait="vmcnt(0)"):
    pass


def gen_numa2(ld="", st="", oracle=True, neutral=False, cconst=0):
    grid, block = 256, 1024
    L = []
    A = L.append
    A("    s_load_dwordx8 s[4:11], s[0:1], 0")
    A("    s_load_dwordx2 s[18:19], s[0:1], 40     ; ws")
    A(f"    s_cmp_ge_u32 s2, {grid}")
    A("    s_cbranch_scc1 L_done")
    A("    s_lshl_b32 s3, s2, 14")
    A("    s_add_u32 s3, s3, 0x1000000")
    A("    v_lshl_add_u32 v30, v0, 4, s3")
    A("    s_waitcnt lgkmcnt(0)")
    A(f"    global_load_dwordx4 v[2:5], v30, s[6:7] {ld}")
    A(f"    global_load_dwordx4 v[6:9], v30, s[4:5] {ld}")
    A("    s_load_dword s12, s[8:9], 0")
    if oracle:
        A("    s_load_dword s20, s[18:19], 0")
    else:
        A(f"    s_mov_b32 s20, {cconst}")
    A("    s_mov_b32 s14, 4")
    A("    s_mov_b32 s15, 0xffff0000")
    A("    s_lshr_b32 s21, s2, 3")
    A("    s_lshl_b32 s21, s21, 2")
    A("    s_and_b32 s22, s2, 3")
    A("    s_add_u32 s21, s21, s22                 ; q")
    A("    s_bfe_u32 s22, s2, 0x10002              ; g")
    A("    s_bfe_u32 s23, s21, 0x10006")
    A("    s_xor_b32 s22, s22, s23")
    A("    s_waitcnt lgkmcnt(0)")
    A("    s_and_b32 s20, s20, 1")
    A("    s_xor_b32 s22, s22, s20                 ; parity")
    if neutral:
        A("    s_lshl_b32 s21, s2, 14")
        A("    v_lshl_add_u32 v1, v0, 4, s21")
    else:
        A("    s_lshl_b32 s21, s21, 15                 ; q*32K")
        A("    s_lshl_b32 s22, s22, 13                 ; parity*8K")
        A("    s_add_u32 s21, s21, s22")
        A("    v_lshrrev_b32 v1, 9, v0                 ; tid>>9")
        A("    v_lshlrev_b32 v1, 14, v1                ; *16K")
        A("    v_and_b32 v31, 511, v0")
        A("    v_lshl_add_u32 v1, v31, 4, v1")
        A("    v_add_u32 v1, s21, v1")
    A("    s_mov_b32 s16, 0x400000")
    A("    s_lshl_b32 s12, s12, 16")
    A("    s_mov_b32 s13, s12")
    A("    v_mov_b32 v0, v30")
    A("    s_waitcnt vmcnt(0)")
    A("    s_branch L_body")
    A("L_loop:")
    A("    s_waitcnt vmcnt(1)")
    A("L_body:")
    F, X, T, U, D = 2, 6, 10, 18, 26
    for k in range(4):
        A(f"    v_lshlrev_b32 v{T+2*k}, 16, v{F+k}")
        A(f"    v_and_b32 v{T+2*k+1}, s15, v{F+k}")
    for k in range(4):
        A(f"    v_lshlrev_b32 v{U+2*k}, 16, v{X+k}")
        A(f"    v_and_b32 v{U+2*k+1}, s15, v{X+k}")
    A("    s_cmp_eq_u32 s14, 0")
    A("    s_cbranch_scc1 L_noload")
    A(f"    global_load_dwordx4 v[2:5], v1, s[6:7] {ld}")
    A(f"    global_load_dwordx4 v[6:9], v1, s[4:5] {ld}")
    A("L_noload:")
    for k in range(4):
        A(f"    v_pk_mul_f32 v[{T+2*k}:{T+2*k+1}], v[{T+2*k}:{T+2*k+1}], s[12:13]")
    for k in range(4):
        A(f"    v_cvt_pk_bf16_f32 v{D+k}, v{T+2*k}, v{T+2*k+1}")
    for k in range(4):
        A(f"    v_lshlrev_b32 v{T+2*k}, 16, v{D+k}")
        A(f"    v_and_b32 v{T+2*k+1}, s15, v{D+k}")
    for k in range(4):
        A(f"    v_pk_add_f32 v[{T+2*k}:{T+2*k+1}], v[{U+2*k}:{U+2*k+1}], v[{T+2*k}:{T+2*k+1}]")
    for k in range(4):
        A(f"    v_cvt_pk_bf16_f32 v{D+k}, v{T+2*k}, v{T+2*k+1}")
    A(f"    global_store_dwordx4 v0, v[{D}:{D+3}], s[10:11] {st}")
    A("    s_sub_u32 s14, s14, 1")
    A("    s_nop 0")
    A("    v_mov_b32 v0, v1")
    A("    v_add_u32 v1, s16, v1")
    A("    s_cbranch_scc0 L_loop")
    return HEADER.format(grid=grid, block=block) + "\n".join(L) + "\n" + FOOTER.format(vgpr=32, sgpr=24, accum=32)


if __name__ == "__main__":
    import json
    name = sys.argv[1]
    kw = json.loads(sys.argv[2]) if len(sys.argv) > 2 else {}
    fn = kw.pop("fn", "oneshot")
    s = globals()["gen_" + fn](**kw)
    open(name, "w").write(s)
```

```python
import sys

HEADER = """; Kernarg layout for this problem (48 bytes, ptrs only, base s[0:1]):
; grid=ceil(out_elems/256), lds=0). Harness parses it; keep it on one line.
; @launch grid=({grid},1,1) block=({block},1,1) lds=0
.amdgcn_target "amdgcn-amd-amdhsa--gfx950"
.text
.globl standalone__rezero__sampling_kernel
.p2align 8
.type standalone__rezero__sampling_kernel,@function
standalone__rezero__sampling_kernel:
"""

FOOTER = """L_done:
    s_endpgm
.section .rodata,"a"
.p2align 6
.amdhsa_kernel standalone__rezero__sampling_kernel
  .amdhsa_next_free_vgpr {vgpr}
  .amdhsa_next_free_sgpr {sgpr}
  .amdhsa_accum_offset {accum}
  .amdhsa_group_segment_fixed_size 0
  .amdhsa_kernarg_size 48
  .amdhsa_user_sgpr_count 2
  .amdhsa_user_sgpr_kernarg_segment_ptr 1
  .amdhsa_system_sgpr_workgroup_id_x 1
  .amdhsa_float_denorm_mode_32 3
  .amdhsa_float_denorm_mode_16_64 3
.end_amdhsa_kernel
"""

NBYTES = 512 * 32 * 640 * 2
NCHUNK = NBYTES // 16


def scale_fx(f, t, sa):
    o = []
    for i in range(4):
        o.append(f"    v_lshlrev_b32 v{t+2*i}, 16, v{f+i}")
        o.append(f"    v_and_b32 v{t+2*i+1}, 0xffff0000, v{f+i}")
    for i in range(4):
        o.append(f"    v_pk_mul_f32 v[{t+2*i}:{t+2*i+1}], v[{t+2*i}:{t+2*i+1}], s[{sa}:{sa+1}]")
    for i in range(4):
        o.append(f"    v_cvt_pk_bf16_f32 v{f+i}, v{t+2*i}, v{t+2*i+1}")
    for i in range(4):
        o.append(f"    v_lshlrev_b32 v{t+2*i}, 16, v{f+i}")
        o.append(f"    v_and_b32 v{t+2*i+1}, 0xffff0000, v{f+i}")
    return o


def add_x(x, t, u, d):
    o = []
    for i in range(4):
        o.append(f"    v_lshlrev_b32 v{u+2*i}, 16, v{x+i}")
        o.append(f"    v_and_b32 v{u+2*i+1}, 0xffff0000, v{x+i}")
    for i in range(4):
        o.append(f"    v_pk_add_f32 v[{t+2*i}:{t+2*i+1}], v[{u+2*i}:{u+2*i+1}], v[{t+2*i}:{t+2*i+1}]")
    for i in range(4):
        o.append(f"    v_cvt_pk_bf16_f32 v{d+i}, v{t+2*i}, v{t+2*i+1}")
    return o


def gen_oneshot(U=1, block=256, ld="", st="", mode="wg", xcd=False, noload=False, nostore=False, onlyx=False, stmask=0, ldmask=0, kx=8, stpriv=False, wb=0, wbflags="sc1", wbwait=True):
    per_wg = U * block
    assert NCHUNK % per_wg == 0
    grid = NCHUNK // per_wg
    span = per_wg * 16
    L = []
    A = L.append
    A("    s_load_dwordx4 s[4:7], s[0:1], 0        ; x, fx")
    A("    s_load_dwordx4 s[8:11], s[0:1], 16")
    if kx != 8:
        A("    s_and_b32 s3, s2, 7")
        A(f"    s_cmp_ge_u32 s3, {kx}")
        A("    s_cbranch_scc1 L_done")
        A("    s_lshr_b32 s2, s2, 3")
        A(f"    s_mul_i32 s2, s2, {kx}")
        A("    s_add_u32 s2, s2, s3")
    A(f"    s_cmp_ge_u32 s2, {grid}")
    A("    s_cbranch_scc1 L_done")
    if xcd:
        assert grid % 8 == 0
        A("    s_and_b32 s3, s2, 7")
        A(f"    s_mul_i32 s3, s3, {grid//8}")
        A("    s_lshr_b32 s2, s2, 3")
        A("    s_add_u32 s2, s2, s3")
    if stpriv:
        A("    s_and_b32 s14, s2, 7")
        A(f"    s_mul_i32 s14, s14, {stmask+1}")
    A(f"    s_mul_i32 s3, s2, {span}")
    A("    v_lshl_add_u32 v0, v0, 4, s3")
    step = block * 16
    addr = []
    for u in range(U):
        off = u * step
        addr.append(off)
    vregs = {}
    nextv = 1
    def vaddr(u):
        off = u * step
        base = (off // 4096) * 4096
        rem = off - base
        if base == 0:
            return "v0", rem
        if base not in vregs:
            nonlocal nextv
            vregs[base] = nextv
            A(f"    v_add_u32 v{nextv}, {base}, v0")
            nextv += 1
        return f"v{vregs[base]}", rem
    if ldmask:
        A(f"    v_and_b32 v0, {hex(ldmask)}, v0")
    va = [vaddr(u) for u in range(U)]
    dbase = (nextv + 1) // 2 * 2
    dbase = max(dbase, 2)
    F = [dbase + 8 * u for u in range(U)]
    X = [dbase + 8 * u + 4 for u in range(U)]
    T = dbase + 8 * U
    Ureg = T + 8
    nv = Ureg + 8
    A("    s_waitcnt lgkmcnt(0)")
    A("    s_load_dword s12, s[8:9], 0")
    for u in range(U):
        r, imm = va[u]
        o = f" offset:{imm}" if imm else ""
        if noload:
            continue
        if not onlyx:
            A(f"    global_load_dwordx4 v[{F[u]}:{F[u]+3}], {r}, s[6:7]{o} {ld}")
        A(f"    global_load_dwordx4 v[{X[u]}:{X[u]+3}], {r}, s[4:5]{o} {ld}")
    A("    s_waitcnt lgkmcnt(0)")
    A("    s_lshl_b32 s12, s12, 16")
    A("    s_mov_b32 s13, s12")
    nstores = 0
    for u in range(U):
        outstanding_loads_after_f = 2 * (U - u) - 1
        A(f"    s_waitcnt vmcnt({min(63, outstanding_loads_after_f + nstores)})")
        L.extend(scale_fx(F[u], T, 12))
        A(f"    s_waitcnt vmcnt({min(63, outstanding_loads_after_f - 1 + nstores)})")
        L.extend(add_x(X[u], T, Ureg, F[u]))
        r, imm = va[u]
        o = f" offset:{imm}" if imm else ""
        if nostore:
            A(f"    ; nostore global_store_dwordx4")
            continue
        if stmask:
            A(f"    v_and_b32 {r}, {hex(stmask)}, {r}")
            if stpriv:
                A(f"    v_add_u32 {r}, s14, {r}")
        A(f"    global_store_dwordx4 {r}, v[{F[u]}:{F[u]+3}], s[10:11]{o} {st}")
        nstores += 1
    if wb:
        A(f"    s_lshr_b32 s15, s2, 3")
        A(f"    s_and_b32 s15, s15, {wb-1}")
        A(f"    v_readfirstlane_b32 s14, v0")
        A(f"    s_sub_u32 s14, s14, s3")
        A(f"    s_or_b32 s15, s15, s14")
        A(f"    s_cmp_lg_u32 s15, 0")
        A(f"    s_cbranch_scc1 L_done")
        if wbwait:
            A(f"    s_waitcnt vmcnt(0)")
        A(f"    buffer_wbl2 {wbflags}")
    vg = (nv + 7) // 8 * 8
    return HEADER.format(grid=grid*8//kx, block=block) + "\n".join(L) + "\n" + FOOTER.format(vgpr=vg, sgpr=16, accum=vg)


def body_chunks(L, U, va, dbase, ld, st, nostore=False):
    A = L.append
    F = [dbase + 8 * u for u in range(U)]
    X = [dbase + 8 * u + 4 for u in range(U)]
    T = dbase + 8 * U
    Ureg = T + 8
    nv = Ureg + 8
    A("    s_waitcnt lgkmcnt(0)")
    A("    s_load_dword s12, s[8:9], 0")
    for u in range(U):
        r, imm = va[u]
        o = f" offset:{imm}" if imm else ""
        A(f"    global_load_dwordx4 v[{F[u]}:{F[u]+3}], {r}, s[6:7]{o} {ld}")
        A(f"    global_load_dwordx4 v[{X[u]}:{X[u]+3}], {r}, s[4:5]{o} {ld}")
    A("    s_waitcnt lgkmcnt(0)")
    A("    s_lshl_b32 s12, s12, 16")
    A("    s_mov_b32 s13, s12")
    nstores = 0
    for u in range(U):
        ol = 2 * (U - u) - 1
        A(f"    s_waitcnt vmcnt({min(63, ol + nstores)})")
        L.extend(scale_fx(F[u], T, 12))
        A(f"    s_waitcnt vmcnt({min(63, ol - 1 + nstores)})")
        L.extend(add_x(X[u], T, Ureg, F[u]))
        r, imm = va[u]
        o = f" offset:{imm}" if imm else ""
        if nostore:
            A("    ; nostore global_store_dwordx4")
            continue
        A(f"    global_store_dwordx4 {r}, v[{F[u]}:{F[u]+3}], s[10:11]{o} {st}")
        nstores += 1
    return nv


def gen_numa(K=1, ld="", st="", c=0, nostore=False, block=256, fm=None):
    assert block == 256
    npairs = NBYTES // 16384
    assert npairs % K == 0
    nj = npairs // K
    assert nj % 4 == 0
    grid = nj * 2
    L = []
    A = L.append
    A("    s_load_dwordx4 s[4:7], s[0:1], 0        ; x, fx")
    A("    s_load_dwordx4 s[8:11], s[0:1], 16")
    A(f"    s_cmp_ge_u32 s2, {grid}")
    A("    s_cbranch_scc1 L_done")
    A("    s_lshr_b32 s14, s2, 3")
    A("    s_lshl_b32 s14, s14, 2")
    A("    s_and_b32 s15, s2, 3")
    A("    s_add_u32 s14, s14, s15                 ; j")
    A("    s_bfe_u32 s15, s2, 0x10002              ; g = bit 2")
    if c:
        A("    s_xor_b32 s15, s15, 1")
    if K > 1:
        A(f"    s_mul_i32 s14, s14, {K}               ; p0 = j*K")
    va = []
    A("    v_lshlrev_b32 v0, 4, v0")
    nextv = 1
    for k in range(K):
        A(f"    s_add_u32 s16, s14, {k}")
        A("    s_bfe_u32 s17, s16, 0x10007")
        A("    s_xor_b32 s17, s17, s15")
        if fm is not None:
            A(f"    s_and_b32 s18, s16, {fm}")
            A("    s_cmp_eq_u32 s18, 0")
            A("    s_cselect_b32 s18, 1, 0")
            A("    s_xor_b32 s17, s17, s18")
        A("    s_lshl_b32 s17, s17, 13")
        A("    s_lshl_b32 s16, s16, 14")
        A("    s_add_u32 s16, s16, s17")
        A(f"    v_add_u32 v{nextv}, s16, v0")
        A(f"    v_add_u32 v{nextv+1}, 4096, v{nextv}")
        va.append((f"v{nextv}", 0))
        va.append((f"v{nextv+1}", 0))
        nextv += 2
    dbase = (nextv + 1) // 2 * 2
    nv = body_chunks(L, 2 * K, va, dbase, ld, st, nostore)
    vg = (nv + 7) // 8 * 8
    return HEADER.format(grid=grid, block=block) + "\n".join(L) + "\n" + FOOTER.format(vgpr=vg, sgpr=24, accum=vg)


def gen_persist(grid=1024, block=256, ld="", st="", contig=False, prio=0, vg=None):
    per_iter = grid * block
    assert NCHUNK % per_iter == 0
    n = NCHUNK // per_iter
    L = []
    A = L.append
    lb = (block * 16).bit_length() - 1
    A("    s_load_dwordx8 s[4:11], s[0:1], 0")
    A(f"    s_cmp_ge_u32 s2, {grid}")
    A("    s_cbranch_scc1 L_done")
    if contig:
        A(f"    s_mul_i32 s3, s2, {block*16*n}")
        stride = block * 16
    else:
        A(f"    s_lshl_b32 s3, s2, {lb}")
        stride = per_iter * 16
    A("    v_lshl_add_u32 v0, v0, 4, s3")
    A("    s_waitcnt lgkmcnt(0)")
    A(f"    global_load_dwordx4 v[2:5], v0, s[6:7] {ld}")
    A(f"    global_load_dwordx4 v[6:9], v0, s[4:5] {ld}")
    A("    s_load_dword s12, s[8:9], 0")
    A(f"    s_mov_b32 s14, {n-1}")
    A("    s_mov_b32 s15, 0xffff0000")
    A(f"    s_mov_b32 s16, {stride}")
    if prio:
        A(f"    s_setprio {prio}")
    A("    v_add_u32 v1, s16, v0")
    A("    s_waitcnt lgkmcnt(0)")
    A("    s_lshl_b32 s12, s12, 16")
    A("    s_mov_b32 s13, s12")
    A("    s_waitcnt vmcnt(0)")
    A("    s_branch L_body")
    A("L_loop:")
    A("    s_waitcnt vmcnt(1)")
    A("L_body:")
    F, X, T, U, D = 2, 6, 10, 18, 26
    for k in range(4):
        A(f"    v_lshlrev_b32 v{T+2*k}, 16, v{F+k}")
        A(f"    v_and_b32 v{T+2*k+1}, s15, v{F+k}")
    for k in range(4):
        A(f"    v_lshlrev_b32 v{U+2*k}, 16, v{X+k}")
        A(f"    v_and_b32 v{U+2*k+1}, s15, v{X+k}")
    A("    s_cmp_eq_u32 s14, 0")
    A("    s_cbranch_scc1 L_noload")
    A(f"    global_load_dwordx4 v[2:5], v1, s[6:7] {ld}")
    A(f"    global_load_dwordx4 v[6:9], v1, s[4:5] {ld}")
    A("L_noload:")
    for k in range(4):
        A(f"    v_pk_mul_f32 v[{T+2*k}:{T+2*k+1}], v[{T+2*k}:{T+2*k+1}], s[12:13]")
    for k in range(4):
        A(f"    v_cvt_pk_bf16_f32 v{D+k}, v{T+2*k}, v{T+2*k+1}")
    for k in range(4):
        A(f"    v_lshlrev_b32 v{T+2*k}, 16, v{D+k}")
        A(f"    v_and_b32 v{T+2*k+1}, s15, v{D+k}")
    for k in range(4):
        A(f"    v_pk_add_f32 v[{T+2*k}:{T+2*k+1}], v[{U+2*k}:{U+2*k+1}], v[{T+2*k}:{T+2*k+1}]")
    for k in range(4):
        A(f"    v_cvt_pk_bf16_f32 v{D+k}, v{T+2*k}, v{T+2*k+1}")
    A(f"    global_store_dwordx4 v0, v[{D}:{D+3}], s[10:11] {st}")
    A("    s_sub_u32 s14, s14, 1")
    A("    s_nop 0")
    A("    v_mov_b32 v0, v1")
    A("    v_add_u32 v1, s16, v1")
    A("    s_cbranch_scc0 L_loop")
    v = vg or 32
    return HEADER.format(grid=grid, block=block) + "\n".join(L) + "\n" + FOOTER.format(vgpr=v, sgpr=24, accum=v)


def persist_body(A, ld, st, first_wait="vmcnt(0)"):
    pass


def gen_numa2(ld="", st="", oracle=True, neutral=False, cconst=0):
    grid, block = 256, 1024
    L = []
    A = L.append
    A("    s_load_dwordx8 s[4:11], s[0:1], 0")
    A("    s_load_dwordx2 s[18:19], s[0:1], 40     ; ws")
    A(f"    s_cmp_ge_u32 s2, {grid}")
    A("    s_cbranch_scc1 L_done")
    A("    s_lshl_b32 s3, s2, 14")
    A("    s_add_u32 s3, s3, 0x1000000")
    A("    v_lshl_add_u32 v30, v0, 4, s3")
    A("    s_waitcnt lgkmcnt(0)")
    A(f"    global_load_dwordx4 v[2:5], v30, s[6:7] {ld}")
    A(f"    global_load_dwordx4 v[6:9], v30, s[4:5] {ld}")
    A("    s_load_dword s12, s[8:9], 0")
    if oracle:
        A("    s_load_dword s20, s[18:19], 0")
    else:
        A(f"    s_mov_b32 s20, {cconst}")
    A("    s_mov_b32 s14, 4")
    A("    s_mov_b32 s15, 0xffff0000")
    A("    s_lshr_b32 s21, s2, 3")
    A("    s_lshl_b32 s21, s21, 2")
    A("    s_and_b32 s22, s2, 3")
    A("    s_add_u32 s21, s21, s22                 ; q")
    A("    s_bfe_u32 s22, s2, 0x10002              ; g")
    A("    s_bfe_u32 s23, s21, 0x10006")
    A("    s_xor_b32 s22, s22, s23")
    A("    s_waitcnt lgkmcnt(0)")
    A("    s_and_b32 s20, s20, 1")
    A("    s_xor_b32 s22, s22, s20                 ; parity")
    if neutral:
        A("    s_lshl_b32 s21, s2, 14")
        A("    v_lshl_add_u32 v1, v0, 4, s21")
    else:
        A("    s_lshl_b32 s21, s21, 15                 ; q*32K")
        A("    s_lshl_b32 s22, s22, 13                 ; parity*8K")
        A("    s_add_u32 s21, s21, s22")
        A("    v_lshrrev_b32 v1, 9, v0                 ; tid>>9")
        A("    v_lshlrev_b32 v1, 14, v1                ; *16K")
        A("    v_and_b32 v31, 511, v0")
        A("    v_lshl_add_u32 v1, v31, 4, v1")
        A("    v_add_u32 v1, s21, v1")
    A("    s_mov_b32 s16, 0x400000")
    A("    s_lshl_b32 s12, s12, 16")
    A("    s_mov_b32 s13, s12")
    A("    v_mov_b32 v0, v30")
    A("    s_waitcnt vmcnt(0)")
    A("    s_branch L_body")
    A("L_loop:")
    A("    s_waitcnt vmcnt(1)")
    A("L_body:")
    F, X, T, U, D = 2, 6, 10, 18, 26
    for k in range(4):
        A(f"    v_lshlrev_b32 v{T+2*k}, 16, v{F+k}")
        A(f"    v_and_b32 v{T+2*k+1}, s15, v{F+k}")
    for k in range(4):
        A(f"    v_lshlrev_b32 v{U+2*k}, 16, v{X+k}")
        A(f"    v_and_b32 v{U+2*k+1}, s15, v{X+k}")
    A("    s_cmp_eq_u32 s14, 0")
    A("    s_cbranch_scc1 L_noload")
    A(f"    global_load_dwordx4 v[2:5], v1, s[6:7] {ld}")
    A(f"    global_load_dwordx4 v[6:9], v1, s[4:5] {ld}")
    A("L_noload:")
    for k in range(4):
        A(f"    v_pk_mul_f32 v[{T+2*k}:{T+2*k+1}], v[{T+2*k}:{T+2*k+1}], s[12:13]")
    for k in range(4):
        A(f"    v_cvt_pk_bf16_f32 v{D+k}, v{T+2*k}, v{T+2*k+1}")
    for k in range(4):
        A(f"    v_lshlrev_b32 v{T+2*k}, 16, v{D+k}")
        A(f"    v_and_b32 v{T+2*k+1}, s15, v{D+k}")
    for k in range(4):
        A(f"    v_pk_add_f32 v[{T+2*k}:{T+2*k+1}], v[{U+2*k}:{U+2*k+1}], v[{T+2*k}:{T+2*k+1}]")
    for k in range(4):
        A(f"    v_cvt_pk_bf16_f32 v{D+k}, v{T+2*k}, v{T+2*k+1}")
    A(f"    global_store_dwordx4 v0, v[{D}:{D+3}], s[10:11] {st}")
    A("    s_sub_u32 s14, s14, 1")
    A("    s_nop 0")
    A("    v_mov_b32 v0, v1")
    A("    v_add_u32 v1, s16, v1")
    A("    s_cbranch_scc0 L_loop")
    return HEADER.format(grid=grid, block=block) + "\n".join(L) + "\n" + FOOTER.format(vgpr=32, sgpr=24, accum=32)


def gen_numa3(ld="nt", st="sc0 sc1", theta=100, need=6, trace=False, force=None, phaseA="s", delay=0):
    grid, block = 256, 1024
    L = []
    A = L.append
    A("    s_load_dwordx8 s[4:11], s[0:1], 0")
    A("    s_load_dwordx2 s[18:19], s[0:1], 32     ; debug")
    if trace:
        A("    s_load_dwordx2 s[40:41], s[0:1], 40     ; ws")
        A("    s_memrealtime s[42:43]")
    A(f"    s_cmp_ge_u32 s2, {grid}")
    A("    s_cbranch_scc1 L_done")
    A("    s_lshl_b32 s3, s2, 14")
    A("    s_add_u32 s3, s3, 0x1000000")
    A("    v_lshl_add_u32 v30, v0, 4, s3")
    A("    v_lshrrev_b32 v31, 6, v0")
    A("    s_lshr_b32 s21, s2, 3")
    A("    s_lshl_b32 s21, s21, 2")
    A("    s_and_b32 s22, s2, 3")
    A("    s_add_u32 s21, s21, s22                 ; q")
    A("    v_readfirstlane_b32 s24, v31")
    A("    s_bfe_u32 s22, s2, 0x10002              ; g")
    A("    s_lshl_b32 s21, s21, 15                 ; q*32K")
    A("    s_bfe_u32 s25, s24, 0x20001             ; window = (k>>1)&3")
    A("    s_lshl_b32 s25, s25, 22")
    A("    s_add_u32 s25, s25, s21")
    A("    s_and_b32 s26, s24, 1")
    A("    s_lshl_b32 s26, s26, 13")
    A("    s_add_u32 s25, s25, s26")
    A("    s_lshl_b32 s26, s22, 10")
    A("    s_xor_b32 s27, s26, 0x400")
    A("    s_add_u32 s26, s26, s25")
    A("    s_add_u32 s27, s27, s25")
    A("    s_waitcnt lgkmcnt(0)")
    A("    s_cmp_lt_u32 s24, 8")
    A("    s_cselect_b32 s28, s4, s6")
    A("    s_cselect_b32 s29, s5, s7")
    A("    s_load_dword s30, s[28:29], s27")
    A(f"    global_load_dwordx4 v[2:5], v30, s[6:7] {ld}")
    A(f"    global_load_dwordx4 v[6:9], v30, s[4:5] {ld}")
    A("    s_load_dword s12, s[8:9], 0")
    A("    s_mov_b32 s14, 4")
    A("    s_mov_b32 s15, 0xffff0000")
    A("    s_mov_b32 s16, 0x400000")
    A("    v_and_b32 v32, 63, v0                   ; lane")
    A("    v_lshlrev_b32 v33, 2, v31")
    A("    s_waitcnt lgkmcnt(0)")
    if delay:
        A(f"    s_nop {delay-1}")
    A("    s_memtime s[32:33]")
    A("    s_waitcnt lgkmcnt(0)")
    A("    s_load_dword s31, s[28:29], s26")
    A("    s_waitcnt lgkmcnt(0)")
    A("    s_memtime s[34:35]")
    A("    s_lshl_b32 s12, s12, 16")
    A("    s_mov_b32 s13, s12")
    A("    v_and_b32 v35, 7, v32")
    A("    v_lshlrev_b32 v35, 3, v35")
    A("    s_waitcnt lgkmcnt(0)")
    A("    s_sub_u32 s34, s34, s32                 ; latency")
    A("    v_mov_b32 v34, s34")
    A("    ds_write_b32 v33, v34")
    A("    s_waitcnt lgkmcnt(0)")
    A("    s_barrier")
    A("    ds_read_b64 v[36:37], v35")
    A("    s_waitcnt lgkmcnt(0)")
    A(f"    v_add_u32 v38, {theta}, v36")
    A(f"    v_add_u32 v39, {theta}, v37")
    A("    v_cmp_lt_u32 vcc, v38, v37")
    A("    s_bcnt1_i32_b64 s36, vcc")
    A("    v_cmp_lt_u32 vcc, v39, v36")
    A("    s_bcnt1_i32_b64 s37, vcc")
    A("    s_mov_b32 s38, s22                      ; default b = g")
    A(f"    s_cmp_ge_u32 s36, {need*8}")
    A("    s_cselect_b32 s38, 0, s38")
    A(f"    s_cmp_ge_u32 s37, {need*8}")
    A("    s_cselect_b32 s38, 1, s38               ; b")
    if force is not None:
        A(f"    s_xor_b32 s38, s22, {force}")
        A("    s_bfe_u32 s39, s21, 0x10015")
        A("    s_xor_b32 s38, s38, s39")
    A("    s_lshl_b32 s39, s38, 13")
    A("    s_add_u32 s39, s39, s21")
    A("    v_lshrrev_b32 v1, 9, v0                 ; tid>>9")
    A("    v_lshlrev_b32 v1, 14, v1")
    A("    v_and_b32 v29, 511, v0")
    A("    v_lshl_add_u32 v1, v29, 4, v1")
    A("    v_add_u32 v1, s39, v1")
    A("    v_mov_b32 v41, v1")
    A("    v_mov_b32 v0, v30")
    A("    s_add_u32 s38, s38, 1")
    A("    s_mov_b32 s17, 0")
    if trace:
        A("    s_memrealtime s[44:45]")
    A("    s_cmp_lg_u32 s24, 0")
    A("    s_cbranch_scc1 L_nopub")
    A("    s_waitcnt vmcnt(0)")
    A("    v_mov_b32 v38, s2")
    A("    v_mov_b32 v39, s38")
    A("    s_mov_b64 s[46:47], exec")
    A("    s_mov_b64 exec, 1")
    A("    global_store_byte v38, v39, s[18:19] sc0 sc1")
    A("    s_mov_b64 exec, s[46:47]")
    A("    s_branch L_body")
    A("L_nopub:")
    A("    s_waitcnt vmcnt(0)")
    A("    s_branch L_body")
    A("L_loop:")
    A("    s_waitcnt vmcnt(1)")
    A("L_body:")
    F, X, T, U, D = 2, 6, 10, 18, 26
    D = 44
    for k in range(4):
        A(f"    v_lshlrev_b32 v{T+2*k}, 16, v{F+k}")
        A(f"    v_and_b32 v{T+2*k+1}, s15, v{F+k}")
    for k in range(4):
        A(f"    v_lshlrev_b32 v{U+2*k}, 16, v{X+k}")
        A(f"    v_and_b32 v{U+2*k+1}, s15, v{X+k}")
    A("    s_cmp_eq_u32 s14, 0")
    A("    s_cbranch_scc1 L_noload")
    A(f"    global_load_dwordx4 v[2:5], v1, s[6:7] {ld}")
    A(f"    global_load_dwordx4 v[6:9], v1, s[4:5] {ld}")
    A("    s_cmp_lg_u32 s14, 1")
    A("    s_cbranch_scc1 L_noload")
    A("    s_xor_b32 s20, s2, 4")
    A("    s_and_b32 s23, s20, 0xfc")
    A("    s_load_dword s48, s[18:19], s23 glc")
    A("L_noload:")
    for k in range(4):
        A(f"    v_pk_mul_f32 v[{T+2*k}:{T+2*k+1}], v[{T+2*k}:{T+2*k+1}], s[12:13]")
    for k in range(4):
        A(f"    v_cvt_pk_bf16_f32 v{D+k}, v{T+2*k}, v{T+2*k+1}")
    for k in range(4):
        A(f"    v_lshlrev_b32 v{T+2*k}, 16, v{D+k}")
        A(f"    v_and_b32 v{T+2*k+1}, s15, v{D+k}")
    for k in range(4):
        A(f"    v_pk_add_f32 v[{T+2*k}:{T+2*k+1}], v[{U+2*k}:{U+2*k+1}], v[{T+2*k}:{T+2*k+1}]")
    for k in range(4):
        A(f"    v_cvt_pk_bf16_f32 v{D+k}, v{T+2*k}, v{T+2*k+1}")
    A(f"    global_store_dwordx4 v0, v[{D}:{D+3}], s[10:11] {st}")
    A("    s_sub_u32 s14, s14, 1")
    A("    s_nop 0")
    A("    v_mov_b32 v0, v1")
    A("    v_add_u32 v1, s16, v1")
    A("    s_cbranch_scc0 L_loop")
    A("    s_cmp_lg_u32 s17, 0")
    A("    s_cbranch_scc1 L_fin")
    A("    s_waitcnt lgkmcnt(0)")
    A("    s_and_b32 s20, s20, 3")
    A("    s_lshl_b32 s20, s20, 3")
    A("    s_lshr_b32 s48, s48, s20")
    A("    s_and_b32 s48, s48, 0xff")
    A("    s_xor_b32 s49, s38, 3")
    A("    s_cmp_eq_u32 s48, s49")
    A("    s_cbranch_scc1 L_fin")
    A("    s_mov_b32 s17, 1")
    A("    v_xor_b32 v0, 0x2000, v41")
    A("    s_mov_b32 s14, 3")
    A("    s_waitcnt vmcnt(0)")
    A(f"    global_load_dwordx4 v[2:5], v0, s[6:7] {ld}")
    A(f"    global_load_dwordx4 v[6:9], v0, s[4:5] {ld}")
    A("    v_add_u32 v1, s16, v0")
    A("    s_waitcnt vmcnt(0)")
    A("    s_branch L_body")
    A("L_fin:")
    if trace:
        A("    s_waitcnt vmcnt(0)")
        A("    s_memrealtime s[50:51]")
        A("    s_getreg_b32 s52, hwreg(HW_REG_XCC_ID)")
        A("    s_lshl_b32 s53, s2, 4")
        A("    s_add_u32 s53, s53, s24")
        A("    s_lshl_b32 s53, s53, 5")
        A("    s_waitcnt lgkmcnt(0)")
        A("    v_mov_b32 v1, s53")
        A("    v_mov_b32 v2, s42")
        A("    v_mov_b32 v3, s44")
        A("    v_mov_b32 v4, s50")
        A("    v_mov_b32 v5, s34")
        A("    v_mov_b32 v6, s38")
        A("    v_mov_b32 v7, s48")
        A("    v_mov_b32 v8, s17")
        A("    v_mov_b32 v9, s52")
        A("    s_mov_b64 exec, 1")
        A("    global_store_dwordx4 v1, v[2:5], s[40:41]")
        A("    global_store_dwordx4 v1, v[6:9], s[40:41] offset:16")
    hdr = HEADER.replace("lds=0", "lds=64")
    return hdr.format(grid=grid, block=block) + "\n".join(L) + "\n" + FOOTER.format(vgpr=48, sgpr=64, accum=48)


if __name__ == "__main__":
    import json
    name = sys.argv[1]
    kw = json.loads(sys.argv[2]) if len(sys.argv) > 2 else {}
    fn = kw.pop("fn", "oneshot")
    s = globals()["gen_" + fn](**kw)
    open(name, "w").write(s)
```

```python
import sys

HEADER = """; Kernarg layout for this problem (48 bytes, ptrs only, base s[0:1]):
; grid=ceil(out_elems/256), lds=0). Harness parses it; keep it on one line.
; @launch grid=({grid},1,1) block=({block},1,1) lds=0
.amdgcn_target "amdgcn-amd-amdhsa--gfx950"
.text
.globl standalone__rezero__sampling_kernel
.p2align 8
.type standalone__rezero__sampling_kernel,@function
standalone__rezero__sampling_kernel:
"""

FOOTER = """L_done:
    s_endpgm
.section .rodata,"a"
.p2align 6
.amdhsa_kernel standalone__rezero__sampling_kernel
  .amdhsa_next_free_vgpr {vgpr}
  .amdhsa_next_free_sgpr {sgpr}
  .amdhsa_accum_offset {accum}
  .amdhsa_group_segment_fixed_size 0
  .amdhsa_kernarg_size 48
  .amdhsa_user_sgpr_count 2
  .amdhsa_user_sgpr_kernarg_segment_ptr 1
  .amdhsa_system_sgpr_workgroup_id_x 1
  .amdhsa_float_denorm_mode_32 3
  .amdhsa_float_denorm_mode_16_64 3
.end_amdhsa_kernel
"""

NBYTES = 512 * 32 * 640 * 2
NCHUNK = NBYTES // 16


def scale_fx(f, t, sa):
    o = []
    for i in range(4):
        o.append(f"    v_lshlrev_b32 v{t+2*i}, 16, v{f+i}")
        o.append(f"    v_and_b32 v{t+2*i+1}, 0xffff0000, v{f+i}")
    for i in range(4):
        o.append(f"    v_pk_mul_f32 v[{t+2*i}:{t+2*i+1}], v[{t+2*i}:{t+2*i+1}], s[{sa}:{sa+1}]")
    for i in range(4):
        o.append(f"    v_cvt_pk_bf16_f32 v{f+i}, v{t+2*i}, v{t+2*i+1}")
    for i in range(4):
        o.append(f"    v_lshlrev_b32 v{t+2*i}, 16, v{f+i}")
        o.append(f"    v_and_b32 v{t+2*i+1}, 0xffff0000, v{f+i}")
    return o


def add_x(x, t, u, d):
    o = []
    for i in range(4):
        o.append(f"    v_lshlrev_b32 v{u+2*i}, 16, v{x+i}")
        o.append(f"    v_and_b32 v{u+2*i+1}, 0xffff0000, v{x+i}")
    for i in range(4):
        o.append(f"    v_pk_add_f32 v[{t+2*i}:{t+2*i+1}], v[{u+2*i}:{u+2*i+1}], v[{t+2*i}:{t+2*i+1}]")
    for i in range(4):
        o.append(f"    v_cvt_pk_bf16_f32 v{d+i}, v{t+2*i}, v{t+2*i+1}")
    return o


def gen_oneshot(U=1, block=256, ld="", st="", mode="wg", xcd=False, noload=False, nostore=False, onlyx=False, stmask=0, ldmask=0, kx=8, stpriv=False, wb=0, wbflags="sc1", wbwait=True):
    per_wg = U * block
    assert NCHUNK % per_wg == 0
    grid = NCHUNK // per_wg
    span = per_wg * 16
    L = []
    A = L.append
    A("    s_load_dwordx4 s[4:7], s[0:1], 0        ; x, fx")
    A("    s_load_dwordx4 s[8:11], s[0:1], 16")
    if kx != 8:
        A("    s_and_b32 s3, s2, 7")
        A(f"    s_cmp_ge_u32 s3, {kx}")
        A("    s_cbranch_scc1 L_done")
        A("    s_lshr_b32 s2, s2, 3")
        A(f"    s_mul_i32 s2, s2, {kx}")
        A("    s_add_u32 s2, s2, s3")
    A(f"    s_cmp_ge_u32 s2, {grid}")
    A("    s_cbranch_scc1 L_done")
    if xcd:
        assert grid % 8 == 0
        A("    s_and_b32 s3, s2, 7")
        A(f"    s_mul_i32 s3, s3, {grid//8}")
        A("    s_lshr_b32 s2, s2, 3")
        A("    s_add_u32 s2, s2, s3")
    if stpriv:
        A("    s_and_b32 s14, s2, 7")
        A(f"    s_mul_i32 s14, s14, {stmask+1}")
    A(f"    s_mul_i32 s3, s2, {span}")
    A("    v_lshl_add_u32 v0, v0, 4, s3")
    step = block * 16
    addr = []
    for u in range(U):
        off = u * step
        addr.append(off)
    vregs = {}
    nextv = 1
    def vaddr(u):
        off = u * step
        base = (off // 4096) * 4096
        rem = off - base
        if base == 0:
            return "v0", rem
        if base not in vregs:
            nonlocal nextv
            vregs[base] = nextv
            A(f"    v_add_u32 v{nextv}, {base}, v0")
            nextv += 1
        return f"v{vregs[base]}", rem
    if ldmask:
        A(f"    v_and_b32 v0, {hex(ldmask)}, v0")
    va = [vaddr(u) for u in range(U)]
    dbase = (nextv + 1) // 2 * 2
    dbase = max(dbase, 2)
    F = [dbase + 8 * u for u in range(U)]
    X = [dbase + 8 * u + 4 for u in range(U)]
    T = dbase + 8 * U
    Ureg = T + 8
    nv = Ureg + 8
    A("    s_waitcnt lgkmcnt(0)")
    A("    s_load_dword s12, s[8:9], 0")
    for u in range(U):
        r, imm = va[u]
        o = f" offset:{imm}" if imm else ""
        if noload:
            continue
        if not onlyx:
            A(f"    global_load_dwordx4 v[{F[u]}:{F[u]+3}], {r}, s[6:7]{o} {ld}")
        A(f"    global_load_dwordx4 v[{X[u]}:{X[u]+3}], {r}, s[4:5]{o} {ld}")
    A("    s_waitcnt lgkmcnt(0)")
    A("    s_lshl_b32 s12, s12, 16")
    A("    s_mov_b32 s13, s12")
    nstores = 0
    for u in range(U):
        outstanding_loads_after_f = 2 * (U - u) - 1
        A(f"    s_waitcnt vmcnt({min(63, outstanding_loads_after_f + nstores)})")
        L.extend(scale_fx(F[u], T, 12))
        A(f"    s_waitcnt vmcnt({min(63, outstanding_loads_after_f - 1 + nstores)})")
        L.extend(add_x(X[u], T, Ureg, F[u]))
        r, imm = va[u]
        o = f" offset:{imm}" if imm else ""
        if nostore:
            A(f"    ; nostore global_store_dwordx4")
            continue
        if stmask:
            A(f"    v_and_b32 {r}, {hex(stmask)}, {r}")
            if stpriv:
                A(f"    v_add_u32 {r}, s14, {r}")
        A(f"    global_store_dwordx4 {r}, v[{F[u]}:{F[u]+3}], s[10:11]{o} {st}")
        nstores += 1
    if wb:
        A(f"    s_lshr_b32 s15, s2, 3")
        A(f"    s_and_b32 s15, s15, {wb-1}")
        A(f"    v_readfirstlane_b32 s14, v0")
        A(f"    s_sub_u32 s14, s14, s3")
        A(f"    s_or_b32 s15, s15, s14")
        A(f"    s_cmp_lg_u32 s15, 0")
        A(f"    s_cbranch_scc1 L_done")
        if wbwait:
            A(f"    s_waitcnt vmcnt(0)")
        A(f"    buffer_wbl2 {wbflags}")
    vg = (nv + 7) // 8 * 8
    return HEADER.format(grid=grid*8//kx, block=block) + "\n".join(L) + "\n" + FOOTER.format(vgpr=vg, sgpr=16, accum=vg)


def body_chunks(L, U, va, dbase, ld, st, nostore=False):
    A = L.append
    F = [dbase + 8 * u for u in range(U)]
    X = [dbase + 8 * u + 4 for u in range(U)]
    T = dbase + 8 * U
    Ureg = T + 8
    nv = Ureg + 8
    A("    s_waitcnt lgkmcnt(0)")
    A("    s_load_dword s12, s[8:9], 0")
    for u in range(U):
        r, imm = va[u]
        o = f" offset:{imm}" if imm else ""
        A(f"    global_load_dwordx4 v[{F[u]}:{F[u]+3}], {r}, s[6:7]{o} {ld}")
        A(f"    global_load_dwordx4 v[{X[u]}:{X[u]+3}], {r}, s[4:5]{o} {ld}")
    A("    s_waitcnt lgkmcnt(0)")
    A("    s_lshl_b32 s12, s12, 16")
    A("    s_mov_b32 s13, s12")
    nstores = 0
    for u in range(U):
        ol = 2 * (U - u) - 1
        A(f"    s_waitcnt vmcnt({min(63, ol + nstores)})")
        L.extend(scale_fx(F[u], T, 12))
        A(f"    s_waitcnt vmcnt({min(63, ol - 1 + nstores)})")
        L.extend(add_x(X[u], T, Ureg, F[u]))
        r, imm = va[u]
        o = f" offset:{imm}" if imm else ""
        if nostore:
            A("    ; nostore global_store_dwordx4")
            continue
        A(f"    global_store_dwordx4 {r}, v[{F[u]}:{F[u]+3}], s[10:11]{o} {st}")
        nstores += 1
    return nv


def gen_numa(K=1, ld="", st="", c=0, nostore=False, block=256, fm=None):
    assert block == 256
    npairs = NBYTES // 16384
    assert npairs % K == 0
    nj = npairs // K
    assert nj % 4 == 0
    grid = nj * 2
    L = []
    A = L.append
    A("    s_load_dwordx4 s[4:7], s[0:1], 0        ; x, fx")
    A("    s_load_dwordx4 s[8:11], s[0:1], 16")
    A(f"    s_cmp_ge_u32 s2, {grid}")
    A("    s_cbranch_scc1 L_done")
    A("    s_lshr_b32 s14, s2, 3")
    A("    s_lshl_b32 s14, s14, 2")
    A("    s_and_b32 s15, s2, 3")
    A("    s_add_u32 s14, s14, s15                 ; j")
    A("    s_bfe_u32 s15, s2, 0x10002              ; g = bit 2")
    if c:
        A("    s_xor_b32 s15, s15, 1")
    if K > 1:
        A(f"    s_mul_i32 s14, s14, {K}               ; p0 = j*K")
    va = []
    A("    v_lshlrev_b32 v0, 4, v0")
    nextv = 1
    for k in range(K):
        A(f"    s_add_u32 s16, s14, {k}")
        A("    s_bfe_u32 s17, s16, 0x10007")
        A("    s_xor_b32 s17, s17, s15")
        if fm is not None:
            A(f"    s_and_b32 s18, s16, {fm}")
            A("    s_cmp_eq_u32 s18, 0")
            A("    s_cselect_b32 s18, 1, 0")
            A("    s_xor_b32 s17, s17, s18")
        A("    s_lshl_b32 s17, s17, 13")
        A("    s_lshl_b32 s16, s16, 14")
        A("    s_add_u32 s16, s16, s17")
        A(f"    v_add_u32 v{nextv}, s16, v0")
        A(f"    v_add_u32 v{nextv+1}, 4096, v{nextv}")
        va.append((f"v{nextv}", 0))
        va.append((f"v{nextv+1}", 0))
        nextv += 2
    dbase = (nextv + 1) // 2 * 2
    nv = body_chunks(L, 2 * K, va, dbase, ld, st, nostore)
    vg = (nv + 7) // 8 * 8
    return HEADER.format(grid=grid, block=block) + "\n".join(L) + "\n" + FOOTER.format(vgpr=vg, sgpr=24, accum=vg)


def gen_persist(grid=1024, block=256, ld="", st="", contig=False, prio=0, vg=None, tlb=0, tlbv=False, dprio=False, bal=0):
    per_iter = grid * block
    assert NCHUNK % per_iter == 0
    n = NCHUNK // per_iter
    L = []
    A = L.append
    lb = (block * 16).bit_length() - 1
    pow2 = (block * 16) == (1 << lb)
    A("    s_load_dwordx8 s[4:11], s[0:1], 0")
    A(f"    s_cmp_ge_u32 s2, {grid}")
    A("    s_cbranch_scc1 L_done")
    if contig:
        A(f"    s_mul_i32 s3, s2, {block*16*n}")
        stride = block * 16
    else:
        if pow2:
            A(f"    s_lshl_b32 s3, s2, {lb}")
        else:
            A(f"    s_mul_i32 s3, s2, {block*16}")
        stride = per_iter * 16
    if bal == 1:
        assert block == 1024
        L.pop()
        A("    s_lshr_b32 s3, s2, 1")
        A("    s_lshl_b32 s3, s3, 15                   ; (w>>1)*32K")
        A("    v_lshlrev_b32 v0, 4, v0")
        A("    v_lshrrev_b32 v1, 1, v0")
        A("    v_xor_b32 v1, v1, v0")
        A("    s_and_b32 s17, s2, 1")
        A("    s_lshl_b32 s17, s17, 12")
        A("    v_xor_b32 v1, s17, v1")
        A("    v_and_b32 v1, 0x1000, v1")
        A("    v_lshl_add_u32 v0, v1, 2, v0            ; + b14<<14")
        A("    v_add_u32 v0, s3, v0")
    elif bal == 2:
        L.pop()
        A("    s_bfe_u32 s17, s2, 0x10003")
        A("    s_xor_b32 s3, s2, s17")
        A("    s_lshl_b32 s3, s3, 14")
        A("    v_lshl_add_u32 v0, v0, 4, s3")
    else:
        A("    v_lshl_add_u32 v0, v0, 4, s3")
    A("    s_waitcnt lgkmcnt(0)")
    A(f"    global_load_dwordx4 v[2:5], v0, s[6:7] {ld}")
    A(f"    global_load_dwordx4 v[6:9], v0, s[4:5] {ld}")
    A("    s_load_dword s12, s[8:9], 0")
    if tlb:
        A(f"    s_cmp_ge_u32 s2, {tlb}")
        A("    s_cbranch_scc1 L_notlb")
        A("    v_readfirstlane_b32 s17, v0")
        A("    s_sub_u32 s17, s17, s3")
        A("    s_lshr_b32 s17, s17, 10")
        A("    s_cmp_eq_u32 s17, 0")
        A("    s_cbranch_scc1 L_notlb")
        A("    s_sub_u32 s17, s17, 1                   ; 0..14")
        A("    s_mul_i32 s18, s17, 52                  ; /5")
        A("    s_lshr_b32 s18, s18, 8")
        A("    s_mul_i32 s19, s18, 5")
        A("    s_sub_u32 s17, s17, s19                 ; 0..4")
        A("    s_lshl_b32 s17, s17, 22                 ; *4MiB")
        A("    s_add_u32 s17, s17, 0x1f000")
        A("    s_add_u32 s19, s17, 0x200000")
        A("    s_cmp_eq_u32 s18, 1")
        A("    s_cselect_b32 s20, s6, s4")
        A("    s_cselect_b32 s21, s7, s5")
        A("    s_cmp_eq_u32 s18, 2")
        A("    s_cselect_b32 s20, s10, s20")
        A("    s_cselect_b32 s21, s11, s21")
        A("    s_load_dword s22, s[20:21], s17")
        A("    s_load_dword s23, s[20:21], s19")
        A("L_notlb:")
    A(f"    s_mov_b32 s14, {n-1}")
    A("    s_mov_b32 s15, 0xffff0000")
    A(f"    s_mov_b32 s16, {stride}")
    if prio:
        A(f"    s_setprio {prio}")
    A("    v_add_u32 v1, s16, v0")
    A("    s_waitcnt lgkmcnt(0)")
    A("    s_lshl_b32 s12, s12, 16")
    A("    s_mov_b32 s13, s12")
    A("    s_waitcnt vmcnt(0)")
    A("    s_branch L_body")
    A("L_loop:")
    A("    s_waitcnt vmcnt(1)")
    A("L_body:")
    if dprio:
        A("    s_setprio 3")
    F, X, T, U, D = 2, 6, 10, 18, 26
    for k in range(4):
        A(f"    v_lshlrev_b32 v{T+2*k}, 16, v{F+k}")
        A(f"    v_and_b32 v{T+2*k+1}, s15, v{F+k}")
    for k in range(4):
        A(f"    v_lshlrev_b32 v{U+2*k}, 16, v{X+k}")
        A(f"    v_and_b32 v{U+2*k+1}, s15, v{X+k}")
    A("    s_cmp_eq_u32 s14, 0")
    A("    s_cbranch_scc1 L_noload")
    A(f"    global_load_dwordx4 v[2:5], v1, s[6:7] {ld}")
    A(f"    global_load_dwordx4 v[6:9], v1, s[4:5] {ld}")
    A("L_noload:")
    if dprio:
        A("    s_setprio 0")
    for k in range(4):
        A(f"    v_pk_mul_f32 v[{T+2*k}:{T+2*k+1}], v[{T+2*k}:{T+2*k+1}], s[12:13]")
    for k in range(4):
        A(f"    v_cvt_pk_bf16_f32 v{D+k}, v{T+2*k}, v{T+2*k+1}")
    for k in range(4):
        A(f"    v_lshlrev_b32 v{T+2*k}, 16, v{D+k}")
        A(f"    v_and_b32 v{T+2*k+1}, s15, v{D+k}")
    for k in range(4):
        A(f"    v_pk_add_f32 v[{T+2*k}:{T+2*k+1}], v[{U+2*k}:{U+2*k+1}], v[{T+2*k}:{T+2*k+1}]")
    for k in range(4):
        A(f"    v_cvt_pk_bf16_f32 v{D+k}, v{T+2*k}, v{T+2*k+1}")
    A(f"    global_store_dwordx4 v0, v[{D}:{D+3}], s[10:11] {st}")
    A("    s_sub_u32 s14, s14, 1")
    A("    s_nop 0")
    A("    v_mov_b32 v0, v1")
    A("    v_add_u32 v1, s16, v1")
    A("    s_cbranch_scc0 L_loop")
    v = vg or 32
    return HEADER.format(grid=grid, block=block) + "\n".join(L) + "\n" + FOOTER.format(vgpr=v, sgpr=24, accum=v)


def persist_body(A, ld, st, first_wait="vmcnt(0)"):
    pass


def gen_numa2(ld="", st="", oracle=True, neutral=False, cconst=0):
    grid, block = 256, 1024
    L = []
    A = L.append
    A("    s_load_dwordx8 s[4:11], s[0:1], 0")
    A("    s_load_dwordx2 s[18:19], s[0:1], 40     ; ws")
    A(f"    s_cmp_ge_u32 s2, {grid}")
    A("    s_cbranch_scc1 L_done")
    A("    s_lshl_b32 s3, s2, 14")
    A("    s_add_u32 s3, s3, 0x1000000")
    A("    v_lshl_add_u32 v30, v0, 4, s3")
    A("    s_waitcnt lgkmcnt(0)")
    A(f"    global_load_dwordx4 v[2:5], v30, s[6:7] {ld}")
    A(f"    global_load_dwordx4 v[6:9], v30, s[4:5] {ld}")
    A("    s_load_dword s12, s[8:9], 0")
    if oracle:
        A("    s_load_dword s20, s[18:19], 0")
    else:
        A(f"    s_mov_b32 s20, {cconst}")
    A("    s_mov_b32 s14, 4")
    A("    s_mov_b32 s15, 0xffff0000")
    A("    s_lshr_b32 s21, s2, 3")
    A("    s_lshl_b32 s21, s21, 2")
    A("    s_and_b32 s22, s2, 3")
    A("    s_add_u32 s21, s21, s22                 ; q")
    A("    s_bfe_u32 s22, s2, 0x10002              ; g")
    A("    s_bfe_u32 s23, s21, 0x10006")
    A("    s_xor_b32 s22, s22, s23")
    A("    s_waitcnt lgkmcnt(0)")
    A("    s_and_b32 s20, s20, 1")
    A("    s_xor_b32 s22, s22, s20                 ; parity")
    if neutral:
        A("    s_lshl_b32 s21, s2, 14")
        A("    v_lshl_add_u32 v1, v0, 4, s21")
    else:
        A("    s_lshl_b32 s21, s21, 15                 ; q*32K")
        A("    s_lshl_b32 s22, s22, 13                 ; parity*8K")
        A("    s_add_u32 s21, s21, s22")
        A("    v_lshrrev_b32 v1, 9, v0                 ; tid>>9")
        A("    v_lshlrev_b32 v1, 14, v1                ; *16K")
        A("    v_and_b32 v31, 511, v0")
        A("    v_lshl_add_u32 v1, v31, 4, v1")
        A("    v_add_u32 v1, s21, v1")
    A("    s_mov_b32 s16, 0x400000")
    A("    s_lshl_b32 s12, s12, 16")
    A("    s_mov_b32 s13, s12")
    A("    v_mov_b32 v0, v30")
    A("    s_waitcnt vmcnt(0)")
    A("    s_branch L_body")
    A("L_loop:")
    A("    s_waitcnt vmcnt(1)")
    A("L_body:")
    if dprio:
        A("    s_setprio 3")
    F, X, T, U, D = 2, 6, 10, 18, 26
    for k in range(4):
        A(f"    v_lshlrev_b32 v{T+2*k}, 16, v{F+k}")
        A(f"    v_and_b32 v{T+2*k+1}, s15, v{F+k}")
    for k in range(4):
        A(f"    v_lshlrev_b32 v{U+2*k}, 16, v{X+k}")
        A(f"    v_and_b32 v{U+2*k+1}, s15, v{X+k}")
    A("    s_cmp_eq_u32 s14, 0")
    A("    s_cbranch_scc1 L_noload")
    A(f"    global_load_dwordx4 v[2:5], v1, s[6:7] {ld}")
    A(f"    global_load_dwordx4 v[6:9], v1, s[4:5] {ld}")
    A("L_noload:")
    if dprio:
        A("    s_setprio 0")
    for k in range(4):
        A(f"    v_pk_mul_f32 v[{T+2*k}:{T+2*k+1}], v[{T+2*k}:{T+2*k+1}], s[12:13]")
    for k in range(4):
        A(f"    v_cvt_pk_bf16_f32 v{D+k}, v{T+2*k}, v{T+2*k+1}")
    for k in range(4):
        A(f"    v_lshlrev_b32 v{T+2*k}, 16, v{D+k}")
        A(f"    v_and_b32 v{T+2*k+1}, s15, v{D+k}")
    for k in range(4):
        A(f"    v_pk_add_f32 v[{T+2*k}:{T+2*k+1}], v[{U+2*k}:{U+2*k+1}], v[{T+2*k}:{T+2*k+1}]")
    for k in range(4):
        A(f"    v_cvt_pk_bf16_f32 v{D+k}, v{T+2*k}, v{T+2*k+1}")
    A(f"    global_store_dwordx4 v0, v[{D}:{D+3}], s[10:11] {st}")
    A("    s_sub_u32 s14, s14, 1")
    A("    s_nop 0")
    A("    v_mov_b32 v0, v1")
    A("    v_add_u32 v1, s16, v1")
    A("    s_cbranch_scc0 L_loop")
    return HEADER.format(grid=grid, block=block) + "\n".join(L) + "\n" + FOOTER.format(vgpr=32, sgpr=24, accum=32)


def gen_numa3(ld="nt", st="sc0 sc1", theta=100, need=6, trace=False, force=None, phaseA="s", delay=0):
    grid, block = 256, 1024
    L = []
    A = L.append
    A("    s_load_dwordx8 s[4:11], s[0:1], 0")
    A("    s_load_dwordx2 s[18:19], s[0:1], 32     ; debug")
    if trace:
        A("    s_load_dwordx2 s[40:41], s[0:1], 40     ; ws")
        A("    s_memrealtime s[42:43]")
    A(f"    s_cmp_ge_u32 s2, {grid}")
    A("    s_cbranch_scc1 L_done")
    A("    s_lshl_b32 s3, s2, 14")
    A("    s_add_u32 s3, s3, 0x1000000")
    A("    v_lshl_add_u32 v30, v0, 4, s3")
    A("    v_lshrrev_b32 v31, 6, v0")
    A("    s_lshr_b32 s21, s2, 3")
    A("    s_lshl_b32 s21, s21, 2")
    A("    s_and_b32 s22, s2, 3")
    A("    s_add_u32 s21, s21, s22                 ; q")
    A("    v_readfirstlane_b32 s24, v31")
    A("    s_bfe_u32 s22, s2, 0x10002              ; g")
    A("    s_lshl_b32 s21, s21, 15                 ; q*32K")
    A("    s_bfe_u32 s25, s24, 0x20001             ; window = (k>>1)&3")
    A("    s_lshl_b32 s25, s25, 22")
    A("    s_add_u32 s25, s25, s21")
    A("    s_and_b32 s26, s24, 1")
    A("    s_lshl_b32 s26, s26, 13")
    A("    s_add_u32 s25, s25, s26")
    A("    s_lshl_b32 s26, s22, 10")
    A("    s_xor_b32 s27, s26, 0x400")
    A("    s_add_u32 s26, s26, s25")
    A("    s_add_u32 s27, s27, s25")
    A("    s_waitcnt lgkmcnt(0)")
    A("    s_cmp_lt_u32 s24, 8")
    A("    s_cselect_b32 s28, s4, s6")
    A("    s_cselect_b32 s29, s5, s7")
    A("    s_load_dword s30, s[28:29], s27")
    A(f"    global_load_dwordx4 v[2:5], v30, s[6:7] {ld}")
    A(f"    global_load_dwordx4 v[6:9], v30, s[4:5] {ld}")
    A("    s_load_dword s12, s[8:9], 0")
    A("    s_mov_b32 s14, 4")
    A("    s_mov_b32 s15, 0xffff0000")
    A("    s_mov_b32 s16, 0x400000")
    A("    v_and_b32 v32, 63, v0                   ; lane")
    A("    v_lshlrev_b32 v33, 2, v31")
    A("    s_waitcnt lgkmcnt(0)")
    if delay:
        A(f"    s_nop {delay-1}")
    A("    s_memtime s[32:33]")
    A("    s_waitcnt lgkmcnt(0)")
    A("    s_load_dword s31, s[28:29], s26")
    A("    s_waitcnt lgkmcnt(0)")
    A("    s_memtime s[34:35]")
    A("    s_lshl_b32 s12, s12, 16")
    A("    s_mov_b32 s13, s12")
    A("    v_and_b32 v35, 7, v32")
    A("    v_lshlrev_b32 v35, 3, v35")
    A("    s_waitcnt lgkmcnt(0)")
    A("    s_sub_u32 s34, s34, s32                 ; latency")
    A("    v_mov_b32 v34, s34")
    A("    ds_write_b32 v33, v34")
    A("    s_waitcnt lgkmcnt(0)")
    A("    s_barrier")
    A("    ds_read_b64 v[36:37], v35")
    A("    s_waitcnt lgkmcnt(0)")
    A(f"    v_add_u32 v38, {theta}, v36")
    A(f"    v_add_u32 v39, {theta}, v37")
    A("    v_cmp_lt_u32 vcc, v38, v37")
    A("    s_bcnt1_i32_b64 s36, vcc")
    A("    v_cmp_lt_u32 vcc, v39, v36")
    A("    s_bcnt1_i32_b64 s37, vcc")
    A("    s_mov_b32 s38, s22                      ; default b = g")
    A(f"    s_cmp_ge_u32 s36, {need*8}")
    A("    s_cselect_b32 s38, 0, s38")
    A(f"    s_cmp_ge_u32 s37, {need*8}")
    A("    s_cselect_b32 s38, 1, s38               ; b")
    if force is not None:
        A(f"    s_xor_b32 s38, s22, {force}")
        A("    s_bfe_u32 s39, s21, 0x10015")
        A("    s_xor_b32 s38, s38, s39")
    A("    s_lshl_b32 s39, s38, 13")
    A("    s_add_u32 s39, s39, s21")
    A("    v_lshrrev_b32 v1, 9, v0                 ; tid>>9")
    A("    v_lshlrev_b32 v1, 14, v1")
    A("    v_and_b32 v29, 511, v0")
    A("    v_lshl_add_u32 v1, v29, 4, v1")
    A("    v_add_u32 v1, s39, v1")
    A("    v_mov_b32 v41, v1")
    A("    v_mov_b32 v0, v30")
    A("    s_add_u32 s38, s38, 1")
    A("    s_mov_b32 s17, 0")
    if trace:
        A("    s_memrealtime s[44:45]")
    A("    s_cmp_lg_u32 s24, 0")
    A("    s_cbranch_scc1 L_nopub")
    A("    s_waitcnt vmcnt(0)")
    A("    v_mov_b32 v38, s2")
    A("    v_mov_b32 v39, s38")
    A("    s_mov_b64 s[46:47], exec")
    A("    s_mov_b64 exec, 1")
    A("    global_store_byte v38, v39, s[18:19] sc0 sc1")
    A("    s_mov_b64 exec, s[46:47]")
    A("    s_branch L_body")
    A("L_nopub:")
    A("    s_waitcnt vmcnt(0)")
    A("    s_branch L_body")
    A("L_loop:")
    A("    s_waitcnt vmcnt(1)")
    A("L_body:")
    F, X, T, U, D = 2, 6, 10, 18, 26
    D = 44
    for k in range(4):
        A(f"    v_lshlrev_b32 v{T+2*k}, 16, v{F+k}")
        A(f"    v_and_b32 v{T+2*k+1}, s15, v{F+k}")
    for k in range(4):
        A(f"    v_lshlrev_b32 v{U+2*k}, 16, v{X+k}")
        A(f"    v_and_b32 v{U+2*k+1}, s15, v{X+k}")
    A("    s_cmp_eq_u32 s14, 0")
    A("    s_cbranch_scc1 L_noload")
    A(f"    global_load_dwordx4 v[2:5], v1, s[6:7] {ld}")
    A(f"    global_load_dwordx4 v[6:9], v1, s[4:5] {ld}")
    A("    s_cmp_lg_u32 s14, 1")
    A("    s_cbranch_scc1 L_noload")
    A("    s_xor_b32 s20, s2, 4")
    A("    s_and_b32 s23, s20, 0xfc")
    A("    s_load_dword s48, s[18:19], s23 glc")
    A("L_noload:")
    for k in range(4):
        A(f"    v_pk_mul_f32 v[{T+2*k}:{T+2*k+1}], v[{T+2*k}:{T+2*k+1}], s[12:13]")
    for k in range(4):
        A(f"    v_cvt_pk_bf16_f32 v{D+k}, v{T+2*k}, v{T+2*k+1}")
    for k in range(4):
        A(f"    v_lshlrev_b32 v{T+2*k}, 16, v{D+k}")
        A(f"    v_and_b32 v{T+2*k+1}, s15, v{D+k}")
    for k in range(4):
        A(f"    v_pk_add_f32 v[{T+2*k}:{T+2*k+1}], v[{U+2*k}:{U+2*k+1}], v[{T+2*k}:{T+2*k+1}]")
    for k in range(4):
        A(f"    v_cvt_pk_bf16_f32 v{D+k}, v{T+2*k}, v{T+2*k+1}")
    A(f"    global_store_dwordx4 v0, v[{D}:{D+3}], s[10:11] {st}")
    A("    s_sub_u32 s14, s14, 1")
    A("    s_nop 0")
    A("    v_mov_b32 v0, v1")
    A("    v_add_u32 v1, s16, v1")
    A("    s_cbranch_scc0 L_loop")
    A("    s_cmp_lg_u32 s17, 0")
    A("    s_cbranch_scc1 L_fin")
    A("    s_waitcnt lgkmcnt(0)")
    A("    s_and_b32 s20, s20, 3")
    A("    s_lshl_b32 s20, s20, 3")
    A("    s_lshr_b32 s48, s48, s20")
    A("    s_and_b32 s48, s48, 0xff")
    A("    s_xor_b32 s49, s38, 3")
    A("    s_cmp_eq_u32 s48, s49")
    A("    s_cbranch_scc1 L_fin")
    A("    s_mov_b32 s17, 1")
    A("    v_xor_b32 v0, 0x2000, v41")
    A("    s_mov_b32 s14, 3")
    A("    s_waitcnt vmcnt(0)")
    A(f"    global_load_dwordx4 v[2:5], v0, s[6:7] {ld}")
    A(f"    global_load_dwordx4 v[6:9], v0, s[4:5] {ld}")
    A("    v_add_u32 v1, s16, v0")
    A("    s_waitcnt vmcnt(0)")
    A("    s_branch L_body")
    A("L_fin:")
    if trace:
        A("    s_waitcnt vmcnt(0)")
        A("    s_memrealtime s[50:51]")
        A("    s_getreg_b32 s52, hwreg(HW_REG_XCC_ID)")
        A("    s_lshl_b32 s53, s2, 4")
        A("    s_add_u32 s53, s53, s24")
        A("    s_lshl_b32 s53, s53, 5")
        A("    s_waitcnt lgkmcnt(0)")
        A("    v_mov_b32 v1, s53")
        A("    v_mov_b32 v2, s42")
        A("    v_mov_b32 v3, s44")
        A("    v_mov_b32 v4, s50")
        A("    v_mov_b32 v5, s34")
        A("    v_mov_b32 v6, s38")
        A("    v_mov_b32 v7, s48")
        A("    v_mov_b32 v8, s17")
        A("    v_mov_b32 v9, s52")
        A("    s_mov_b64 exec, 1")
        A("    global_store_dwordx4 v1, v[2:5], s[40:41]")
        A("    global_store_dwordx4 v1, v[6:9], s[40:41] offset:16")
    hdr = HEADER.replace("lds=0", "lds=64")
    return hdr.format(grid=grid, block=block) + "\n".join(L) + "\n" + FOOTER.format(vgpr=48, sgpr=64, accum=48)


def compute_chunk(A, F, X, T, U, D, mask="s15"):
    for k in range(4):
        A(f"    v_lshlrev_b32 v{T+2*k}, 16, v{F+k}")
        A(f"    v_and_b32 v{T+2*k+1}, {mask}, v{F+k}")
    for k in range(4):
        A(f"    v_pk_mul_f32 v[{T+2*k}:{T+2*k+1}], v[{T+2*k}:{T+2*k+1}], s[12:13]")
    for k in range(4):
        A(f"    v_cvt_pk_bf16_f32 v{D+k}, v{T+2*k}, v{T+2*k+1}")
    for k in range(4):
        A(f"    v_lshlrev_b32 v{U+2*k}, 16, v{X+k}")
        A(f"    v_and_b32 v{U+2*k+1}, {mask}, v{X+k}")
    for k in range(4):
        A(f"    v_lshlrev_b32 v{T+2*k}, 16, v{D+k}")
        A(f"    v_and_b32 v{T+2*k+1}, {mask}, v{D+k}")
    for k in range(4):
        A(f"    v_pk_add_f32 v[{T+2*k}:{T+2*k+1}], v[{U+2*k}:{U+2*k+1}], v[{T+2*k}:{T+2*k+1}]")
    for k in range(4):
        A(f"    v_cvt_pk_bf16_f32 v{D+k}, v{T+2*k}, v{T+2*k+1}")


def gen_dbuf(grid=256, block=1024, ld="nt", st="sc0 sc1", prio=False):
    per_iter = grid * block
    n = NCHUNK // per_iter
    assert NCHUNK % per_iter == 0
    L = []
    A = L.append
    lb = (block * 16).bit_length() - 1
    stride = per_iter * 16
    FA, XA, FB, XB, T, U, D = 2, 6, 10, 14, 18, 26, 34
    A("    s_load_dwordx8 s[4:11], s[0:1], 0")
    A(f"    s_cmp_ge_u32 s2, {grid}")
    A("    s_cbranch_scc1 L_done")
    A(f"    s_lshl_b32 s3, s2, {lb}")
    A("    v_lshl_add_u32 v0, v0, 4, s3")
    A("    s_waitcnt lgkmcnt(0)")
    A(f"    global_load_dwordx4 v[{FA}:{FA+3}], v0, s[6:7] {ld}")
    A(f"    global_load_dwordx4 v[{XA}:{XA+3}], v0, s[4:5] {ld}")
    A("    s_load_dword s12, s[8:9], 0")
    A(f"    s_mov_b32 s14, {n-1}")
    A("    s_mov_b32 s15, 0xffff0000")
    A(f"    s_mov_b32 s16, {stride}")
    A("    v_add_u32 v1, s16, v0")
    A("    s_waitcnt lgkmcnt(0)")
    A("    s_lshl_b32 s12, s12, 16")
    A("    s_mov_b32 s13, s12")
    A("    s_waitcnt vmcnt(0)")
    A("    s_branch L_A1")
    A("L_A:")
    A("    s_waitcnt vmcnt(1)")
    A("L_A1:")
    for (lab, F, X, F2, X2, nxtlab, cur, nxt) in (("A", FA, XA, FB, XB, None, 0, 1), ("B", FB, XB, FA, XA, "L_A", 1, 0)):
        if lab == "B":
            A("    s_waitcnt vmcnt(1)")
        A("    s_cmp_eq_u32 s14, 0")
        A(f"    s_cbranch_scc1 L_n{lab}")
        A(f"    global_load_dwordx4 v[{F2}:{F2+3}], v{nxt}, s[6:7] {ld}")
        A(f"    global_load_dwordx4 v[{X2}:{X2+3}], v{nxt}, s[4:5] {ld}")
        A(f"L_n{lab}:")
        compute_chunk(A, F, X, T, U, D)
        A(f"    global_store_dwordx4 v{cur}, v[{D}:{D+3}], s[10:11] {st}")
        A("    s_sub_u32 s14, s14, 1")
        A("    s_cbranch_scc1 L_done")
        A(f"    v_add_u32 v{cur}, s16, v{nxt}")
    A("    s_branch L_A")
    return HEADER.format(grid=grid, block=block) + "\n".join(L) + "\n" + FOOTER.format(vgpr=40, sgpr=24, accum=40)


def gen_skew(m=4, ld="nt", st="sc0 sc1", flip=0):
    grid, block, n = 256, 1024, 5
    stride = 0x400000
    L = []
    A = L.append
    F, X, T, U, D, S2 = 2, 6, 10, 18, 26, 34
    A("    s_load_dwordx8 s[4:11], s[0:1], 0")
    A(f"    s_cmp_ge_u32 s2, {grid}")
    A("    s_cbranch_scc1 L_done")
    A("    v_readfirstlane_b32 s17, v0")
    A("    s_lshl_b32 s3, s2, 14")
    A("    v_lshl_add_u32 v0, v0, 4, s3            ; T0 offset")
    A(f"    s_mov_b32 s14, {n-1}")
    A("    s_mov_b32 s15, 0xffff0000")
    A(f"    s_mov_b32 s16, {stride}")
    A("    s_mov_b32 s18, 0")
    A(f"    s_bitcmp{1-flip}_b32 s2, 0")
    A("    s_cbranch_scc1 L_odd")
    A(f"    s_cmp_lt_u32 s17, {64*m}")
    A("    s_cbranch_scc0 L_go")
    off = 4 * stride + (16384 if flip == 0 else -16384) + (16 - m) * 1024
    A(f"    v_add_u32 v42, {hex(off)}, v0")
    A("    s_waitcnt lgkmcnt(0)")
    A(f"    global_load_dwordx4 v[{F}:{F+3}], v42, s[6:7] {ld}")
    A(f"    global_load_dwordx4 v[{X}:{X+3}], v42, s[4:5] {ld}")
    A(f"    global_load_dwordx4 v[{S2}:{S2+3}], v0, s[6:7] {ld}")
    A(f"    global_load_dwordx4 v[{S2+4}:{S2+7}], v0, s[4:5] {ld}")
    A("    s_load_dword s12, s[8:9], 0")
    A("    v_mov_b32 v43, v0")
    A("    v_mov_b32 v0, v42")
    A("    v_mov_b32 v1, v43")
    A("    s_mov_b32 s18, 1")
    A("    s_mov_b32 s14, 0")
    A("    s_waitcnt lgkmcnt(0)")
    A("    s_lshl_b32 s12, s12, 16")
    A("    s_mov_b32 s13, s12")
    A("    s_waitcnt vmcnt(2)")
    A("    s_branch L_body")
    A("L_odd:")
    A(f"    s_cmp_ge_u32 s17, {64*(16-m)}")
    A(f"    s_cselect_b32 s14, {n-2}, s14")
    A("L_go:")
    A("    s_waitcnt lgkmcnt(0)")
    A(f"    global_load_dwordx4 v[{F}:{F+3}], v0, s[6:7] {ld}")
    A(f"    global_load_dwordx4 v[{X}:{X+3}], v0, s[4:5] {ld}")
    A("    s_load_dword s12, s[8:9], 0")
    A("    v_add_u32 v1, s16, v0")
    A("    s_waitcnt lgkmcnt(0)")
    A("    s_lshl_b32 s12, s12, 16")
    A("    s_mov_b32 s13, s12")
    A("    s_waitcnt vmcnt(0)")
    A("    s_branch L_body")
    A("L_loop:")
    A("    s_waitcnt vmcnt(1)")
    A("L_body:")
    for k in range(4):
        A(f"    v_lshlrev_b32 v{T+2*k}, 16, v{F+k}")
        A(f"    v_and_b32 v{T+2*k+1}, s15, v{F+k}")
    for k in range(4):
        A(f"    v_lshlrev_b32 v{U+2*k}, 16, v{X+k}")
        A(f"    v_and_b32 v{U+2*k+1}, s15, v{X+k}")
    A("    s_cmp_eq_u32 s14, 0")
    A("    s_cbranch_scc1 L_noload")
    A(f"    global_load_dwordx4 v[{F}:{F+3}], v1, s[6:7] {ld}")
    A(f"    global_load_dwordx4 v[{X}:{X+3}], v1, s[4:5] {ld}")
    A("L_noload:")
    for k in range(4):
        A(f"    v_pk_mul_f32 v[{T+2*k}:{T+2*k+1}], v[{T+2*k}:{T+2*k+1}], s[12:13]")
    for k in range(4):
        A(f"    v_cvt_pk_bf16_f32 v{D+k}, v{T+2*k}, v{T+2*k+1}")
    for k in range(4):
        A(f"    v_lshlrev_b32 v{T+2*k}, 16, v{D+k}")
        A(f"    v_and_b32 v{T+2*k+1}, s15, v{D+k}")
    for k in range(4):
        A(f"    v_pk_add_f32 v[{T+2*k}:{T+2*k+1}], v[{U+2*k}:{U+2*k+1}], v[{T+2*k}:{T+2*k+1}]")
    for k in range(4):
        A(f"    v_cvt_pk_bf16_f32 v{D+k}, v{T+2*k}, v{T+2*k+1}")
    A(f"    global_store_dwordx4 v0, v[{D}:{D+3}], s[10:11] {st}")
    A("    s_sub_u32 s14, s14, 1")
    A("    s_nop 0")
    A("    v_mov_b32 v0, v1")
    A("    v_add_u32 v1, s16, v1")
    A("    s_cbranch_scc0 L_loop")
    A("    s_cmp_eq_u32 s18, 0")
    A("    s_cbranch_scc1 L_done")
    A("    s_mov_b32 s18, 0")
    A(f"    s_mov_b32 s14, {n-1}")
    A("    v_mov_b32 v0, v43")
    A("    v_add_u32 v1, s16, v43")
    A("    s_waitcnt vmcnt(1)")
    for k in range(4):
        A(f"    v_mov_b32 v{F+k}, v{S2+k}")
        A(f"    v_mov_b32 v{X+k}, v{S2+4+k}")
    A("    s_branch L_body")
    return HEADER.format(grid=grid, block=block) + "\n".join(L) + "\n" + FOOTER.format(vgpr=48, sgpr=24, accum=48)


if __name__ == "__main__":
    import json
    name = sys.argv[1]
    kw = json.loads(sys.argv[2]) if len(sys.argv) > 2 else {}
    fn = kw.pop("fn", "oneshot")
    s = globals()["gen_" + fn](**kw)
    open(name, "w").write(s)
```

```python
import sys, json
sys.path.insert(0, 'gen')
from gen import HEADER, FOOTER


def gen(ld="nt", st="sc0 sc1", c=0, first=2, nstar=1):
    grid, block = 256, 1024
    L = []
    A = L.append
    F, X, T, U, D = 2, 6, 10, 18, 26
    cur, nxt, neu, numa = 30, 31, 32, 33
    nc = 5 - first
    A("    s_load_dwordx8 s[4:11], s[0:1], 0")
    A(f"    s_cmp_ge_u32 s2, {grid}")
    A("    s_cbranch_scc1 L_done")
    A("    s_lshl_b32 s3, s2, 14")
    A("    s_add_u32 s3, s3, 0x400000")
    A(f"    v_lshl_add_u32 v{cur}, v0, 4, s3")
    A("    v_readfirstlane_b32 s24, v0")
    A("    s_lshr_b32 s24, s24, 6")
    if first == 0:
        raise NotImplementedError
    A("    s_waitcnt lgkmcnt(0)")
    A(f"    global_load_dwordx4 v[{F}:{F+3}], v{cur}, s[6:7] {ld}")
    A(f"    global_load_dwordx4 v[{X}:{X+3}], v{cur}, s[4:5] {ld}")
    A("    s_load_dword s12, s[8:9], 0")
    if nc == 3:
        A("    s_mul_i32 s25, s24, 43")
        A("    s_lshr_b32 s25, s25, 7")
        A("    s_mul_i32 s25, s25, 3")
        A("    s_sub_u32 s25, s24, s25                 ; j")
    elif nc in (1, 2, 4):
        A(f"    s_and_b32 s25, s24, {nc-1}")
    A(f"    s_sub_u32 s25, {5-first}, s25")
    A("    s_lshr_b32 s21, s2, 3")
    A("    s_lshl_b32 s21, s21, 2")
    A("    s_and_b32 s22, s2, 3")
    A("    s_add_u32 s21, s21, s22                 ; q")
    A("    s_bfe_u32 s22, s2, 0x10002              ; g")
    A("    s_bfe_u32 s23, s21, 0x10006             ; bit6(q)")
    A("    s_xor_b32 s23, s23, s22")
    if c:
        A("    s_xor_b32 s23, s23, 1                   ; b")
    A("    s_lshl_b32 s21, s21, 15")
    A("    s_lshl_b32 s23, s23, 13")
    A("    s_add_u32 s21, s21, s23")
    A("    v_lshrrev_b32 v34, 9, v0")
    A("    v_lshlrev_b32 v34, 14, v34")
    A("    v_and_b32 v35, 511, v0")
    A("    v_lshl_add_u32 v34, v35, 4, v34")
    A(f"    v_add_u32 v{numa}, s21, v34")
    A("    s_mov_b32 s14, 4")
    A("    s_mov_b32 s15, 0xffff0000")
    A("    s_mov_b32 s16, 0x400000")
    A(f"    v_add_u32 v{neu}, s16, v{cur}")
    A("    s_waitcnt lgkmcnt(0)")
    A("    s_lshl_b32 s12, s12, 16")
    A("    s_mov_b32 s13, s12")
    A("    s_waitcnt vmcnt(0)")
    A("    s_branch L_body")
    A("L_loop:")
    A("    s_waitcnt vmcnt(1)")
    A("L_body:")
    for k in range(4):
        A(f"    v_lshlrev_b32 v{T+2*k}, 16, v{F+k}")
        A(f"    v_and_b32 v{T+2*k+1}, s15, v{F+k}")
    for k in range(4):
        A(f"    v_lshlrev_b32 v{U+2*k}, 16, v{X+k}")
        A(f"    v_and_b32 v{U+2*k+1}, s15, v{X+k}")
    A("    s_cmp_eq_u32 s14, 0")
    A("    s_cbranch_scc1 L_noload")
    A("    s_cmp_eq_u32 s14, s25")
    A("    s_cbranch_scc1 L_star")
    A(f"    v_mov_b32 v{nxt}, v{neu}")
    A(f"    v_add_u32 v{neu}, s16, v{neu}")
    A("    s_branch L_issue")
    A("L_star:")
    A(f"    v_mov_b32 v{nxt}, v{numa}")
    A("L_issue:")
    A(f"    global_load_dwordx4 v[{F}:{F+3}], v{nxt}, s[6:7] {ld}")
    A(f"    global_load_dwordx4 v[{X}:{X+3}], v{nxt}, s[4:5] {ld}")
    A("L_noload:")
    for k in range(4):
        A(f"    v_pk_mul_f32 v[{T+2*k}:{T+2*k+1}], v[{T+2*k}:{T+2*k+1}], s[12:13]")
    for k in range(4):
        A(f"    v_cvt_pk_bf16_f32 v{D+k}, v{T+2*k}, v{T+2*k+1}")
    for k in range(4):
        A(f"    v_lshlrev_b32 v{T+2*k}, 16, v{D+k}")
        A(f"    v_and_b32 v{T+2*k+1}, s15, v{D+k}")
    for k in range(4):
        A(f"    v_pk_add_f32 v[{T+2*k}:{T+2*k+1}], v[{U+2*k}:{U+2*k+1}], v[{T+2*k}:{T+2*k+1}]")
    for k in range(4):
        A(f"    v_cvt_pk_bf16_f32 v{D+k}, v{T+2*k}, v{T+2*k+1}")
    A(f"    global_store_dwordx4 v{cur}, v[{D}:{D+3}], s[10:11] {st}")
    A("    s_sub_u32 s14, s14, 1")
    A("    s_nop 0")
    A(f"    v_mov_b32 v{cur}, v{nxt}")
    A("    s_cbranch_scc0 L_loop")
    return HEADER.format(grid=grid, block=block) + "\n".join(L) + "\n" + FOOTER.format(vgpr=40, sgpr=32, accum=40)


if __name__ == "__main__":
    kw = json.loads(sys.argv[2]) if len(sys.argv) > 2 else {}
    open(sys.argv[1], "w").write(gen(**kw))
```

```python
import sys, json
sys.path.insert(0, 'gen')
from gen import HEADER, FOOTER


def gen(ld="nt", st="sc0 sc1", thr=130, trace=False, force=None, arr="rot", noprobe=False, nstar=2, pats=None):
    grid, block = 256, 1024
    L = []
    A = L.append
    F, X, T, U, D = 2, 6, 10, 18, 26
    cur, nxt, neu, numa = 30, 31, 32, 33
    base = {"x": "s[4:5]", "fx": "s[6:7]", "out": "s[10:11]", "rot": "s[40:41]"}[arr]
    if pats is None:
        pats = ["SSN"] if nstar == 2 else (["SSS"] if nstar == 3 else ["SNN"])
    def mask(p):
        m = 0
        for i, ch in enumerate(p):
            if ch == "S":
                m |= 1 << (2 - i)
        return m
    lo = hi = 0
    for k in range(16):
        m = mask(pats[k % len(pats)])
        if k < 8:
            lo |= m << (4 * k)
        else:
            hi |= m << (4 * (k - 8))
    A("    s_load_dwordx8 s[4:11], s[0:1], 0")
    A("    s_load_dwordx2 s[18:19], s[0:1], 40     ; ws")
    A("    s_memrealtime s[42:43]")
    A(f"    s_cmp_ge_u32 s2, {grid}")
    A("    s_cbranch_scc1 L_done")
    A("    s_lshl_b32 s3, s2, 14")
    A(f"    s_add_u32 s3, s3, {hex(nstar * 0x400000)}")
    A(f"    v_lshl_add_u32 v{cur}, v0, 4, s3")
    A("    v_readfirstlane_b32 s24, v0")
    A("    s_lshr_b32 s21, s2, 3")
    A("    s_lshl_b32 s21, s21, 2")
    A("    s_and_b32 s22, s2, 3")
    A("    s_add_u32 s21, s21, s22                 ; q")
    A("    s_bfe_u32 s22, s2, 0x10002              ; g")
    A("    s_and_b32 s20, s2, 0xfb")
    A("    s_lshl_b32 s20, s20, 7")
    A("    s_lshl_b32 s23, s22, 6")
    A("    s_or_b32 s23, s23, s24")
    A("    s_cmp_lg_u32 s23, 0")
    A("    s_cbranch_scc1 L_work")
    A("    s_bfe_u32 s45, s2, 0x10003")
    A("    s_lshl_b32 s32, s45, 13")
    A("    s_lshl_b32 s33, s21, 15")
    A("    s_add_u32 s32, s32, s33")
    A("    s_xor_b32 s33, s32, 0x2000")
    A("    v_mov_b32 v45, s20")
    if arr == "rot":
        A("    s_mul_i32 s39, s21, 43")
        A("    s_lshr_b32 s39, s39, 7")
        A("    s_mul_i32 s39, s39, 3")
        A("    s_sub_u32 s44, s21, s39                 ; q % 3: the tensor this pair goes by")
    A("    s_waitcnt lgkmcnt(0)")
    if arr == "rot":
        A("    s_cmp_eq_u32 s44, 1")
        A("    s_cselect_b32 s40, s6, s4")
        A("    s_cselect_b32 s41, s7, s5")
        A("    s_cmp_eq_u32 s44, 2")
        A("    s_cselect_b32 s40, s10, s40")
        A("    s_cselect_b32 s41, s11, s41")
    if not noprobe:
        A(f"    s_load_dword s46, {base}, s32")
        A(f"    s_load_dword s47, {base}, s33")
    A(f"    global_load_dwordx4 v[{F}:{F+3}], v{cur}, s[6:7] {ld}")
    A(f"    global_load_dwordx4 v[{X}:{X+3}], v{cur}, s[4:5] {ld}")
    if not noprobe:
        A("    s_waitcnt lgkmcnt(1)")
        A("    s_memtime s[34:35]")
        A("    s_waitcnt lgkmcnt(0)")
        A("    s_memtime s[36:37]")
    A("    s_memrealtime s[50:51]")
    A("    s_waitcnt lgkmcnt(0)")
    if not noprobe:
        A("    s_sub_u32 s36, s36, s34")
    else:
        A("    s_mov_b32 s36, 0")
    A(f"    s_cmp_gt_u32 s36, {thr}")
    A("    s_cselect_b32 s46, 0, 1")
    A("    s_xor_b32 s46, s46, s45                 ; b")
    if force is not None:
        A("    s_bfe_u32 s46, s2, 0x10007")
        A(f"    s_xor_b32 s46, s46, {force}")
    A("    s_and_b32 s50, s50, 0xfffffffe")
    A("    s_or_b32 s50, s50, s46")
    A("    v_mov_b32 v46, s50")
    A("    v_mov_b32 v47, s51")
    A("    s_mov_b64 exec, 1")
    A("    global_store_dwordx2 v45, v[46:47], s[18:19] sc0 sc1")
    A("    s_mov_b64 exec, -1")
    A("    s_load_dword s12, s[8:9], 0             ; alpha")
    A("    s_mov_b32 s29, 1")
    A("    s_branch L_join")
    A("L_work:")
    A("    s_waitcnt lgkmcnt(0)")
    A(f"    global_load_dwordx4 v[{F}:{F+3}], v{cur}, s[6:7] {ld}")
    A(f"    global_load_dwordx4 v[{X}:{X+3}], v{cur}, s[4:5] {ld}")
    A("    s_load_dword s12, s[8:9], 0             ; alpha")
    A("    s_mov_b32 s29, 0")
    A("    s_cmp_eq_u32 s24, 960")
    A("    s_cbranch_scc1 L_touch")
    A("L_join:")
    A(f"    s_mov_b32 s26, {hex(lo)}")
    A(f"    s_mov_b32 s27, {hex(hi)}")
    A("    s_lshr_b32 s31, s24, 4")
    A("    s_lshr_b64 s[26:27], s[26:27], s31")
    A("    s_and_b32 s26, s26, 7")
    A("    s_lshl_b32 s26, s26, 1")
    A("    v_lshrrev_b32 v34, 9, v0")
    A("    v_lshlrev_b32 v34, 14, v34")
    A("    v_and_b32 v35, 511, v0")
    A("    v_lshl_add_u32 v34, v35, 4, v34")
    A("    s_lshl_b32 s21, s21, 15")
    A(f"    v_add_u32 v{numa}, s21, v34")
    A("    s_mov_b32 s14, 4")
    A("    s_mov_b32 s15, 0xffff0000")
    A("    s_mov_b32 s28, 0x400000")
    A(f"    v_add_u32 v{neu}, s28, v{cur}")
    A(f"    v_mov_b32 v{nxt}, v{neu}")
    A(f"    s_mov_b32 s23, {nstar}")
    A("    s_mov_b32 s27, 0")
    A("    s_mov_b32 s30, 0")
    A("    s_waitcnt lgkmcnt(0)")
    A("    s_lshl_b32 s12, s12, 16")
    A("    s_mov_b32 s13, s12")
    A("    s_cmp_lg_u32 s29, 0")
    A("    s_cbranch_scc1 L_loop")
    A("    s_waitcnt vmcnt(0)")
    A("    s_branch L_body")
    A("L_loop:")
    A("    s_waitcnt vmcnt(1)")
    A("L_body:")
    for k in range(4):
        A(f"    v_lshlrev_b32 v{T+2*k}, 16, v{F+k}")
        A(f"    v_and_b32 v{T+2*k+1}, s15, v{F+k}")
    for k in range(4):
        A(f"    v_lshlrev_b32 v{U+2*k}, 16, v{X+k}")
        A(f"    v_and_b32 v{U+2*k+1}, s15, v{X+k}")
    A("    s_cmp_eq_u32 s14, 0")
    A("    s_cbranch_scc1 L_noload")
    A("    s_cmp_ge_u32 s23, s14")
    A("    s_cbranch_scc1 L_trystar")
    A("    s_bitcmp1_b32 s26, s14")
    A("    s_cbranch_scc1 L_plan")
    A("L_neutral:")
    A(f"    v_mov_b32 v{nxt}, v{neu}")
    A(f"    v_add_u32 v{neu}, s28, v{neu}")
    A("L_issue:")
    A(f"    global_load_dwordx4 v[{F}:{F+3}], v{nxt}, s[6:7] {ld}")
    A(f"    global_load_dwordx4 v[{X}:{X+3}], v{nxt}, s[4:5] {ld}")
    A("L_noload:")
    for k in range(4):
        A(f"    v_pk_mul_f32 v[{T+2*k}:{T+2*k+1}], v[{T+2*k}:{T+2*k+1}], s[12:13]")
    for k in range(4):
        A(f"    v_cvt_pk_bf16_f32 v{D+k}, v{T+2*k}, v{T+2*k+1}")
    for k in range(4):
        A(f"    v_lshlrev_b32 v{T+2*k}, 16, v{D+k}")
        A(f"    v_and_b32 v{T+2*k+1}, s15, v{D+k}")
    for k in range(4):
        A(f"    v_pk_add_f32 v[{T+2*k}:{T+2*k+1}], v[{U+2*k}:{U+2*k+1}], v[{T+2*k}:{T+2*k+1}]")
    for k in range(4):
        A(f"    v_cvt_pk_bf16_f32 v{D+k}, v{T+2*k}, v{T+2*k+1}")
    A(f"    global_store_dwordx4 v{cur}, v[{D}:{D+3}], s[10:11] {st}")
    A("    s_sub_u32 s14, s14, 1")
    A("    s_nop 0")
    A(f"    v_mov_b32 v{cur}, v{nxt}")
    A("    s_cbranch_scc0 L_loop")
    A("    s_cmp_eq_u32 s27, 0")
    A("    s_cbranch_scc1 L_fin")
    A("    s_sub_u32 s27, s27, 1")
    A(f"    v_subrev_u32 v{numa}, s28, v{numa}")
    A(f"    v_xor_b32 v{cur}, 0x2000, v{numa}")
    A("    s_mov_b32 s14, 0")
    A("    s_waitcnt vmcnt(0)")
    A(f"    global_load_dwordx4 v[{F}:{F+3}], v{cur}, s[6:7] {ld}")
    A(f"    global_load_dwordx4 v[{X}:{X+3}], v{cur}, s[4:5] {ld}")
    if trace:
        A("    s_mov_b32 s59, 1")
    A("    s_waitcnt vmcnt(0)")
    A("    s_branch L_body")
    A("L_fin:")
    if trace:
        A("    s_waitcnt vmcnt(0)")
        A("    s_memrealtime s[50:51]")
        A("    s_getreg_b32 s52, hwreg(HW_REG_XCC_ID)")
        A("    s_lshr_b32 s24, s24, 6")
        A("    s_lshl_b32 s53, s2, 4")
        A("    s_add_u32 s53, s53, s24")
        A("    s_lshl_b32 s53, s53, 5")
        A("    s_add_u32 s53, s53, 0x100000")
        A("    s_waitcnt lgkmcnt(0)")
        A("    s_lshl_b32 s59, s59, 8")
        A("    s_or_b32 s52, s52, s59")
        A("    v_mov_b32 v1, s53")
        A("    v_mov_b32 v2, s42")
        A("    v_mov_b32 v3, s54")
        A("    v_mov_b32 v4, s50")
        A("    v_mov_b32 v5, s36")
        A("    v_mov_b32 v6, s38")
        A("    v_mov_b32 v7, s58")
        A("    v_mov_b32 v8, s52")
        A("    v_mov_b32 v9, s58")
        A("    s_mov_b64 exec, 1")
        A("    global_store_dwordx4 v1, v[2:5], s[18:19]")
        A("    global_store_dwordx4 v1, v[6:9], s[18:19] offset:16")
    A("    s_endpgm")
    A("L_touch:")
    A("    s_branch L_join")
    A("L_plan:")
    A("    s_cmp_eq_u32 s23, 0")
    A("    s_cbranch_scc1 L_neutral")
    A("L_trystar:")
    A("    s_cmp_eq_u32 s30, 2")
    A("    s_cbranch_scc1 L_star")
    A("    s_cmp_eq_u32 s30, 3")
    A("    s_cbranch_scc1 L_giveup")
    A("    s_cmp_lg_u32 s30, 0")
    A("    s_cbranch_scc1 L_reread")
    A("    s_load_dwordx2 s[48:49], s[18:19], s20")
    A("    s_branch L_check")
    A("L_reread:")
    A("    s_load_dwordx2 s[48:49], s[18:19], s20 glc")
    A("L_check:")
    A("    s_sub_u32 s50, s42, 100")
    A("    s_subb_u32 s51, s43, 0")
    A("    s_waitcnt lgkmcnt(0)")
    A("    s_sub_u32 s50, s48, s50")
    A("    s_subb_u32 s51, s49, s51")
    A("    s_cmp_lg_u32 s51, 0")
    A("    s_cbranch_scc1 L_invalid")
    A("    s_cmp_gt_u32 s50, 100000")
    A("    s_cbranch_scc1 L_invalid")
    A("    s_and_b32 s38, s48, 1")
    A("    s_xor_b32 s38, s38, s22")
    A("    s_lshl_b32 s46, s38, 13")
    A(f"    v_add_u32 v{numa}, s46, v{numa}")
    A("    s_mov_b32 s30, 2")
    A("L_star:")
    A(f"    v_mov_b32 v{nxt}, v{numa}")
    A(f"    v_add_u32 v{numa}, s28, v{numa}")
    A("    s_sub_u32 s23, s23, 1")
    if trace:
        A("    s_memrealtime s[54:55]")
    A("    s_branch L_issue")
    A("L_invalid:")
    if trace:
        A("    s_add_u32 s58, s58, 1")
    A("    s_mov_b32 s30, 1")
    A("    s_cmp_lt_u32 s23, s14")
    A("    s_cbranch_scc1 L_neutral")
    A("L_giveup:")
    A("    s_mov_b32 s30, 3")
    A("    s_add_u32 s27, s27, 1")
    A("    s_branch L_star")
    s = HEADER.format(grid=grid, block=block) + "\n".join(L) + "\n" + FOOTER.format(vgpr=48, sgpr=64, accum=48)
    if trace:
        s = s.replace("L_join:\n", "L_join:\n    s_mov_b32 s59, 0\n    s_mov_b32 s58, 0\n    s_mov_b32 s38, 0\n", 1)
        s = s.replace("L_work:\n", "L_work:\n    s_mov_b32 s36, 0\n", 1)
    return s


if __name__ == "__main__":
    kw = json.loads(sys.argv[2]) if len(sys.argv) > 2 else {}
    open(sys.argv[1], "w").write(gen(**kw))
```

```python
import sys,re
sys.path.insert(0,'gen')
import gen
def add_trace(s, block):
    nw = block//64
    nv = int(re.search(r"next_free_vgpr (\d+)", s).group(1))
    va, vb = nv, nv+1
    nv2 = nv+8
    s = s.replace("standalone__rezero__sampling_kernel:\n", """standalone__rezero__sampling_kernel:
    s_memrealtime s[20:21]
    s_load_dwordx2 s[26:27], s[0:1], 40
    v_lshrrev_b32 VA, 6, v0
    v_and_b32 VB, 63, v0
    s_nop 0
    v_readfirstlane_b32 s31, VA
    s_mul_i32 s30, s2, %d
    s_add_u32 s30, s30, s31
    s_lshl_b32 s30, s30, 5
""" % nw,1)
    s = s.replace("    s_waitcnt lgkmcnt(0)\n    s_load_dword s12", "    s_waitcnt lgkmcnt(0)\n    s_memrealtime s[22:23]\n    s_load_dword s12",1)
    m = re.search(r"    s_waitcnt vmcnt\(\d+\)\n", s)
    s = s[:m.end()] + "    s_memrealtime s[24:25]\n" + s[m.end():]
    i = max(s.rfind("    global_store_dwordx4"), s.rfind("    ; nostore"))
    s = s[:i] + "    s_memrealtime s[32:33]\n" + s[i:]
    tail = """    s_waitcnt vmcnt(0)
    s_memrealtime s[34:35]
    s_getreg_b32 s36, hwreg(HW_REG_HW_ID)
    s_getreg_b32 s37, hwreg(HW_REG_XCC_ID)
    v_cmp_eq_u32 vcc, 0, VB
    s_and_saveexec_b64 s[28:29], vcc
    s_cbranch_execz L_done
    s_waitcnt lgkmcnt(0)
    v_mov_b32 v1, s30
    v_mov_b32 v2, s20
    v_mov_b32 v3, s22
    v_mov_b32 v4, s24
    v_mov_b32 v5, s32
    v_mov_b32 v6, s34
    v_mov_b32 v7, s36
    v_mov_b32 v8, s37
    v_mov_b32 v9, s2
    global_store_dwordx4 v1, v[2:5], s[26:27]
    global_store_dwordx4 v1, v[6:9], s[26:27] offset:16
"""
    s = s.replace("L_done:\n", tail + "L_done:\n",1)
    s = re.sub(r"\.amdhsa_next_free_sgpr \d+", ".amdhsa_next_free_sgpr 40", s)
    s = re.sub(r"\.amdhsa_next_free_vgpr \d+", ".amdhsa_next_free_vgpr %d"%nv2, s)
    s = re.sub(r"\.amdhsa_accum_offset \d+", ".amdhsa_accum_offset %d"%nv2, s)
    s = s.replace("VA","v%d"%va).replace("VB","v%d"%vb)
    return s
if __name__=="__main__":
    import json
    kw=json.loads(sys.argv[2])
    fn=kw.pop("fn","oneshot")
    s=getattr(gen,"gen_"+fn)(**kw)
    open(sys.argv[1],"w").write(add_trace(s, kw.get("block",256)))
```
